```python
import torch

def _softmax(x, axis=-1):
    return torch.softmax(x, dim=axis)
def _gelu(x):
    return torch.nn.functional.gelu(x, approximate="tanh")
def _silu(x):
    return torch.nn.functional.silu(x)
def _sigmoid(x):
    return torch.sigmoid(x)
def _layernorm(x, axis=-1, eps=1e-5):
    m = x.mean(dim=axis, keepdim=True)
    v = x.var(dim=axis, keepdim=True, unbiased=False)
    return (x - m) / torch.sqrt(v + eps)
def _scatter_add(tgt, idx, src, axis=0):
    return tgt.clone().index_add_(axis, idx, src)
def _segment_sum(src, seg, n):
    out = torch.zeros((n,) + src.shape[1:], dtype=src.dtype)
    return out.index_add_(0, seg, src)
def _pad(x, pw):
    flat = tuple(v for pair in reversed(pw) for v in pair)
    return torch.nn.functional.pad(x, flat)

kernel_name = 'sequential_preLN__spectral_gfnet__dense_activation_squared_relu__prompt'

def setup_inputs():

    _w = (lambda a: (lambda t: t.to(torch.bfloat16) if t.is_floating_point() else t)(torch.as_tensor(a)))
    def _A_setup():
        B, S, D = 1, 2048, 512
        Df = D // 2 + 1
        return {
            "x": _w((lambda *s: torch.randn(*s, dtype=torch.bfloat16) * 0.05)(B, S, D)),
            "w_r": _w((lambda *s: torch.randn(*s, dtype=torch.bfloat16) * 0.4)(S, Df) * 0.02),
            "w_i": _w((lambda *s: torch.randn(*s, dtype=torch.bfloat16) * 0.4)(S, Df) * 0.02),
        }
    _A_in = _A_setup()

    def _B_setup():
        B, S, D, F = 1, 2048, 512, 1376
        return {
            "x": _w((lambda *s: torch.randn(*s, dtype=torch.bfloat16) * 0.05)(B, S, D)),
            "w1": _w((lambda *s: torch.randn(*s, dtype=torch.bfloat16) * 0.05)(D, F)),
            "b1": _w((lambda *s: torch.randn(*s, dtype=torch.bfloat16) * 0.2)(F)),
            "w2": _w((lambda *s: torch.randn(*s, dtype=torch.bfloat16) * 0.05)(F, D)),
            "b2": _w((lambda *s: torch.randn(*s, dtype=torch.bfloat16) * 0.8)(D)),
        }
    _B_in = _B_setup()

    return {
        "A_x": _A_in["x"],
        "A_w_r": _A_in["w_r"],
        "A_w_i": _A_in["w_i"],
        "B_x": _B_in["x"],
        "B_w1": _B_in["w1"],
        "B_b1": _B_in["b1"],
        "B_w2": _B_in["w2"],
        "B_b2": _B_in["b2"],
    }

def reference(A_x, A_w_r, A_w_i, B_x, B_w1, B_b1, B_w2, B_b2):
    def _A_ref(x, w_r, w_i):
        B, S, D = x.shape
        X = (lambda x, axes=(-2,-1): torch.fft.rfft2(x.float(), dim=axes))(x, axes=(-2, -1))
        W = w_r + 1j * w_i
        X = X * W
        y = (lambda x, s, axes=(-2,-1): torch.fft.irfft2(x, s=s, dim=axes).to(torch.bfloat16))(X, (S, D), axes=(-2, -1))
        return y

    def _B_ref(x, w1, b1, w2, b2):
        h = torch.einsum("bsd,df->bsf", x, w1) + b1
        zero = torch.zeros_like(h)
        r = torch.where(h > zero, h, zero)
        h = r * r
        out = torch.einsum("bsf,fd->bsd", h, w2) + b2
        return out

    x = A_x
    h = x + _A_ref(_layernorm(x, axis=-1), A_w_r, A_w_i)
    h2 = h + _B_ref(_layernorm(h, axis=-1), B_w1, B_b1, B_w2, B_b2)
    return h2
```

```python
import sys
NAME = "sequential_preLN__spectral_gfnet__dense_activation_squared_relu__prompt"
extra = int(sys.argv[1]) if len(sys.argv) > 1 else 0
out = []
launch = []
kd = []
def emit(s): out.append(s)

MB = 1 << 20
WS_LN1, WS_Z, WS_F, WS_ZP, WS_H, WS_LN2, WS_HID = 0, 4*MB, 12*MB, 20*MB, 28*MB, 32*MB, 36*MB

def begin(name, grid, block, vg=64):
    launch.append(f"; @launch kernel={name} grid=({grid},1,1) block=({block},1,1) lds=0")
    emit(f".text\n.globl {name}\n.p2align 8\n.type {name},@function\n{name}:")
    emit(f"  s_cmp_ge_u32 s2, {grid}\n  s_cbranch_scc1 {name}_end")
    kd.append(f""".amdhsa_kernel {name}
  .amdhsa_next_free_vgpr {vg}
  .amdhsa_next_free_sgpr 96
  .amdhsa_accum_offset {vg}
  .amdhsa_group_segment_fixed_size 0
  .amdhsa_kernarg_size 88
  .amdhsa_user_sgpr_count 2
  .amdhsa_user_sgpr_kernarg_segment_ptr 1
  .amdhsa_system_sgpr_workgroup_id_x 1
.end_amdhsa_kernel""")
def end(name):
    emit(f"{name}_end:\n  s_endpgm")

def srd(R, karg_off, nbytes, add=0):
    emit(f"  s_load_dwordx2 s[{R}:{R+1}], s[0:1], {karg_off}\n  s_waitcnt lgkmcnt(0)")
    if add:
        emit(f"  s_add_u32 s{R}, s{R}, {add}\n  s_addc_u32 s{R+1}, s{R+1}, 0")
    emit(f"  s_mov_b32 s{R+2}, {nbytes}\n  s_mov_b32 s{R+3}, 0x20000")

def rnd_bf16(v):
    emit(f"  v_cvt_pk_bf16_f32 {v}, {v}, {v}\n  v_lshlrev_b32 {v}, 16, {v}")

def wave_sum(v, t):
    for off in (0x041F, 0x081F, 0x101F, 0x201F, 0x401F):
        emit(f"  ds_swizzle_b32 {t}, {v} offset:{off}\n  s_waitcnt lgkmcnt(0)\n  v_add_f32 {v}, {v}, {t}")
    emit(f"  s_nop 1\n  v_readlane_b32 s40, {v}, 0\n  v_readlane_b32 s41, {v}, 32\n  s_nop 3\n  v_mov_b32 {v}, s40\n  v_add_f32 {v}, s41, {v}")

def k_ln(name, src_bf16):
    begin(name, 2048, 64)
    if src_bf16:
        srd(8, 0, 2*MB)
        srd(12, 80, 4*MB, WS_LN1)
        emit("  s_lshl_b32 s3, s2, 10\n  v_lshlrev_b32 v1, 4, v0\n  buffer_load_dwordx4 v[4:7], v1, s[8:11], s3 offen\n  s_waitcnt vmcnt(0)")
        for i in range(4):
            emit(f"  v_lshlrev_b32 v{8+2*i}, 16, v{4+i}\n  v_and_b32 v{9+2*i}, 0xffff0000, v{4+i}")
    else:
        srd(8, 80, 4*MB, WS_H)
        srd(12, 80, 4*MB, WS_LN2)
        emit("  s_lshl_b32 s3, s2, 11\n  v_lshlrev_b32 v1, 5, v0\n  buffer_load_dwordx4 v[8:11], v1, s[8:11], s3 offen\n  buffer_load_dwordx4 v[12:15], v1, s[8:11], s3 offen offset:16\n  s_waitcnt vmcnt(0)")
    emit("  v_mov_b32 v20, v8")
    for i in range(1, 8): emit(f"  v_add_f32 v20, v20, v{8+i}")
    wave_sum("v20", "v21")
    emit("  v_mul_f32 v20, 0x3b000000, v20")
    emit("  v_mov_b32 v22, 0")
    for i in range(8): emit(f"  v_sub_f32 v23, v{8+i}, v20\n  v_fmac_f32 v22, v23, v23")
    wave_sum("v22", "v21")
    emit("  v_mul_f32 v22, 0x3b000000, v22")
    rnd_bf16("v20"); rnd_bf16("v22")
    emit("  v_add_f32 v22, 0x3727c5ac, v22")
    rnd_bf16("v22")
    emit("  v_sqrt_f32 v22, v22\n  s_nop 1")
    rnd_bf16("v22")
    emit("  v_rcp_f32 v22, v22\n  s_nop 1")
    for i in range(8):
        emit(f"  v_sub_f32 v{8+i}, v{8+i}, v20")
        rnd_bf16(f"v{8+i}")
        emit(f"  v_mul_f32 v{8+i}, v{8+i}, v22")
        rnd_bf16(f"v{8+i}")
    emit("  s_lshl_b32 s3, s2, 11\n  v_lshlrev_b32 v1, 5, v0\n  buffer_store_dwordx4 v[8:11], v1, s[12:15], s3 offen\n  buffer_store_dwordx4 v[12:15], v1, s[12:15], s3 offen offset:16\n  s_waitcnt vmcnt(0)")
    end(name)

ZST = 257*8
def k_rowdft(name):
    begin(name, 2048, 320)
    srd(8, 80, 4*MB, WS_LN1)
    srd(12, 80, 2048*ZST, WS_Z)
    emit(f"""  s_lshl_b32 s3, s2, 11
  v_mov_b32 v10, 0
  v_mov_b32 v11, 0
  v_mov_b32 v2, 0
  v_mov_b32 v3, 0
  s_mov_b32 s4, 0
{name}_loop:
  buffer_load_dword v4, v3, s[8:11], s3 offen
  v_and_b32 v5, 511, v2
  v_cvt_f32_u32 v5, v5
  v_mul_f32 v5, 0x3b000000, v5
  v_cos_f32 v6, v5
  v_sin_f32 v7, v5
  s_waitcnt vmcnt(0)
  v_fmac_f32 v10, v4, v6
  v_fma_f32 v11, -v4, v7, v11
  v_add_u32 v2, v2, v0
  s_add_u32 s3, s3, 4
  s_add_u32 s4, s4, 1
  s_cmp_lt_u32 s4, 512
  s_cbranch_scc1 {name}_loop
  s_mul_i32 s3, s2, {ZST}
  v_lshlrev_b32 v1, 3, v0
  v_cmp_gt_u32 vcc, 257, v0
  s_and_saveexec_b64 s[20:21], vcc
  s_cbranch_execz {name}_end
  buffer_store_dwordx2 v[10:11], v1, s[12:15], s3 offen
  s_waitcnt vmcnt(0)""")
    end(name)

def k_coldft(name, inverse):
    begin(name, 2048, 320)
    srd(8, 80, 2048*ZST, WS_F if inverse else WS_Z)
    srd(12, 80, 2048*ZST, WS_ZP if inverse else WS_F)
    if not inverse:
        srd(16, 8, 2048*514); srd(24, 16, 2048*514)
    sg = "" if inverse else "-"
    ng = "-" if inverse else ""
    emit(f"""  v_mov_b32 v10, 0
  v_mov_b32 v11, 0
  v_lshlrev_b32 v1, 3, v0
  v_cmp_gt_u32 vcc, 257, v0
  s_and_saveexec_b64 s[20:21], vcc
  s_cbranch_execz {name}_end
  s_mov_b32 s3, 0
  s_mov_b32 s4, 0
  s_mov_b32 s5, 0
{name}_loop:
  buffer_load_dwordx2 v[4:5], v1, s[8:11], s3 offen
  s_and_b32 s6, s5, 2047
  v_cvt_f32_u32 v8, s6
  v_mul_f32 v8, 0x3a000000, v8
  v_cos_f32 v6, v8
  v_sin_f32 v7, v8
  s_waitcnt vmcnt(0)
  v_fmac_f32 v10, v4, v6
  v_fma_f32 v10, {ng}v5, v7, v10
  v_fmac_f32 v11, v5, v6
  v_fma_f32 v11, {sg}v4, v7, v11
  s_add_u32 s5, s5, s2
  s_add_u32 s3, s3, {ZST}
  s_add_u32 s4, s4, 1
  s_cmp_lt_u32 s4, 2048
  s_cbranch_scc1 {name}_loop""")
    if not inverse:
        emit(f"""  s_mul_i32 s3, s2, 514
  v_lshlrev_b32 v2, 1, v0
  buffer_load_ushort v12, v2, s[16:19], s3 offen
  buffer_load_ushort v13, v2, s[24:27], s3 offen
  s_waitcnt vmcnt(0)
  v_lshlrev_b32 v12, 16, v12
  v_lshlrev_b32 v13, 16, v13
  v_mul_f32 v14, v10, v12
  v_fma_f32 v14, -v11, v13, v14
  v_mul_f32 v15, v10, v13
  v_fmac_f32 v15, v11, v12
  v_mov_b32 v10, v14
  v_mov_b32 v11, v15""")
    else:
        emit("  v_mul_f32 v10, 0x3a000000, v10\n  v_mul_f32 v11, 0x3a000000, v11")
    emit(f"""  s_mul_i32 s3, s2, {ZST}
  buffer_store_dwordx2 v[10:11], v1, s[12:15], s3 offen
  s_waitcnt vmcnt(0)""")
    end(name)

def k_irow(name):
    begin(name, 2048, 512)
    srd(8, 80, 2048*ZST, WS_ZP)
    srd(12, 80, 4*MB, WS_H)
    srd(16, 0, 2*MB)
    emit(f"""  s_mul_i32 s3, s2, {ZST}
  v_mov_b32 v10, 0
  v_mov_b32 v2, 0
  v_mov_b32 v3, 0
  s_mov_b32 s4, 0
{name}_loop:
  buffer_load_dwordx2 v[4:5], v3, s[8:11], s3 offen
  v_and_b32 v8, 511, v2
  v_cvt_f32_u32 v8, v8
  v_mul_f32 v8, 0x3b000000, v8
  v_cos_f32 v6, v8
  v_sin_f32 v7, v8
  s_and_b32 s6, s4, 255
  s_cmp_eq_u32 s6, 0
  s_cselect_b32 s7, 1.0, 2.0
  s_cselect_b32 s22, 0, 2.0
  s_waitcnt vmcnt(0)
  v_mul_f32 v4, s7, v4
  v_mul_f32 v5, s22, v5
  v_fmac_f32 v10, v4, v6
  v_fma_f32 v10, -v5, v7, v10
  v_add_u32 v2, v2, v0
  s_add_u32 s3, s3, 8
  s_add_u32 s4, s4, 1
  s_cmp_lt_u32 s4, 257
  s_cbranch_scc1 {name}_loop
  v_mul_f32 v10, 0x3b000000, v10""")
    rnd_bf16("v10")
    emit("""  s_lshl_b32 s3, s2, 10
  v_lshlrev_b32 v1, 1, v0
  buffer_load_ushort v4, v1, s[16:19], s3 offen
  s_waitcnt vmcnt(0)
  v_lshlrev_b32 v4, 16, v4
  v_add_f32 v10, v10, v4""")
    rnd_bf16("v10")
    emit("""  s_lshl_b32 s3, s2, 11
  v_lshlrev_b32 v1, 2, v0
  buffer_store_dword v10, v1, s[12:15], s3 offen
  s_waitcnt vmcnt(0)""")
    end(name)

def k_gemm1(name):
    begin(name, 4096, 704)
    srd(8, 80, 4*MB, WS_LN2)
    srd(12, 80, 2048*1376*4, WS_HID)
    srd(16, 32, 512*1376*2)
    srd(24, 40, 1376*2)
    emit(f"""  v_cmp_gt_u32 vcc, 688, v0
  s_and_saveexec_b64 s[20:21], vcc
  s_cbranch_execz {name}_end
  s_lshr_b32 s5, s2, 1
  s_and_b32 s6, s2, 1
  s_mul_i32 s6, s6, 688
  v_add_u32 v0, s6, v0
  s_lshl_b32 s3, s5, 11
  s_mov_b32 s7, 0
  v_mov_b32 v10, 0
  v_mov_b32 v3, 0
  v_lshlrev_b32 v1, 1, v0
  s_mov_b32 s4, 0
{name}_loop:
  buffer_load_dword v4, v3, s[8:11], s3 offen
  buffer_load_ushort v5, v1, s[16:19], s7 offen
  s_waitcnt vmcnt(0)
  v_lshlrev_b32 v5, 16, v5
  v_fmac_f32 v10, v4, v5
  s_add_u32 s3, s3, 4
  s_add_u32 s7, s7, 2752
  s_add_u32 s4, s4, 1
  s_cmp_lt_u32 s4, 512
  s_cbranch_scc1 {name}_loop
  buffer_load_ushort v5, v1, s[24:27], 0 offen
  s_waitcnt vmcnt(0)
  v_lshlrev_b32 v5, 16, v5""")
    rnd_bf16("v10")
    emit("  v_add_f32 v10, v10, v5")
    rnd_bf16("v10")
    emit("  v_max_f32 v10, 0, v10\n  v_mul_f32 v10, v10, v10")
    rnd_bf16("v10")
    emit(f"""  s_mul_i32 s3, s5, {1376*4}
  v_lshlrev_b32 v1, 2, v0
  buffer_store_dword v10, v1, s[12:15], s3 offen
  s_waitcnt vmcnt(0)""")
    end(name)

def k_gemm2(name):
    begin(name, 2048, 512)
    srd(8, 80, 2048*1376*4, WS_HID)
    srd(12, 64, 2*MB)
    srd(16, 48, 512*1376*2)
    srd(24, 56, 1024)
    srd(28, 80, 4*MB, WS_H)
    emit(f"""  s_mul_i32 s3, s2, {1376*4}
  s_mov_b32 s7, 0
  v_mov_b32 v10, 0
  v_mov_b32 v3, 0
  v_lshlrev_b32 v1, 1, v0
  s_mov_b32 s4, 0
{name}_loop:
  buffer_load_dword v4, v3, s[8:11], s3 offen
  buffer_load_ushort v5, v1, s[16:19], s7 offen
  s_waitcnt vmcnt(0)
  v_lshlrev_b32 v5, 16, v5
  v_fmac_f32 v10, v4, v5
  s_add_u32 s3, s3, 4
  s_add_u32 s7, s7, 1024
  s_add_u32 s4, s4, 1
  s_cmp_lt_u32 s4, 1376
  s_cbranch_scc1 {name}_loop
  buffer_load_ushort v5, v1, s[24:27], 0 offen
  s_lshl_b32 s3, s2, 11
  v_lshlrev_b32 v2, 2, v0
  buffer_load_dword v6, v2, s[28:31], s3 offen
  s_waitcnt vmcnt(0)
  v_lshlrev_b32 v5, 16, v5""")
    rnd_bf16("v10")
    emit("  v_add_f32 v10, v10, v5")
    rnd_bf16("v10")
    emit("  v_add_f32 v10, v10, v6\n  v_cvt_pk_bf16_f32 v10, v10, v10")
    emit("""  s_lshl_b32 s3, s2, 10
  buffer_store_short v10, v1, s[12:15], s3 offen
  s_waitcnt vmcnt(0)""")
    end(name)

k_ln("ln1_kernel", True)
k_rowdft("rowdft_kernel")
k_coldft("coldft_kernel", False)
k_coldft("icoldft_kernel", True)
k_irow("irow_kernel")
k_ln("ln2_kernel", False)
k_gemm1("gemm1_kernel")
k_gemm2("gemm2_kernel")
if extra:
    begin("nop_kernel", 256, 256, vg=8); end("nop_kernel")
    l = launch.pop()
    launch += [l]*extra
print("\n".join(launch))
print('.amdgcn_target "amdgcn-amd-amdhsa--gfx950"')
print("\n".join(out))
print('.section .rodata,"a"')
for k in kd:
    print(".p2align 6"); print(k)
```

```python
import re, struct, contextlib

def f2h(x): return "0x%08x" % struct.unpack("<I", struct.pack("<f", x))[0]
REG = re.compile(r"^(-|\|)?([vas])(?:(\d+)|\[(\d+):(\d+)\])\|?$")
def regs_of(tok):
    tok = tok.strip()
    if tok.startswith("abs("): tok = tok[4:-1]
    if tok in ("vcc", "exec"): return [tok + "_lo", tok + "_hi"]
    if tok in ("vcc_lo", "vcc_hi", "exec_lo", "exec_hi", "m0"): return [tok]
    m = REG.match(tok)
    if not m: return []
    if m.group(3) is not None: return [m.group(2) + m.group(3)]
    return [m.group(2) + str(i) for i in range(int(m.group(4)), int(m.group(5)) + 1)]

TRANS = ("v_exp_f32", "v_log_f32", "v_rcp_f32", "v_rsq_f32", "v_sqrt_f32", "v_sin_f32", "v_cos_f32")
NODST_S = ("s_cmp", "s_waitcnt", "s_barrier", "s_nop", "s_branch", "s_cbranch", "s_setprio", "s_sleep", "s_endpgm", "s_bitcmp")

class Inst:
    def __init__(self, text, blk=None, tag=None, raw=False):
        self.text = text; self.blk = blk; self.tag = tag; self.raw = raw
        self.dst = []; self.src = []; self.kind = "other"; self.op = ""
        self.srcA = self.srcB = self.srcC = []
        if raw: return
        t = text.split(";")[0].strip()
        sp = t.split(None, 1); op = sp[0]; self.op = op
        rest = sp[1] if len(sp) > 1 else ""
        ops = [o.strip() for o in re.split(r",(?![^\[]*\])", rest)] if rest else []
        mods = ""
        if ops:
            last = ops[-1].split(None, 1)
            ops[-1] = last[0] if last else ""
            mods = last[1] if len(last) > 1 else ""
        self.mods = mods
        R = [regs_of(o) for o in ops]
        flat = lambda L: [r for x in L for r in x]
        if op.startswith("buffer_load") or op.startswith("global_load"):
            self.kind = "vmem"
            if re.search(r"\blds\b", mods): self.src = flat(R) + ["m0"]; self.dma = True
            else: self.dst = R[0]; self.src = flat(R[1:])
        elif op.startswith("buffer_store") or op.startswith("global_store") or op.startswith("buffer_atomic"):
            self.kind = "vmem"; self.src = flat(R); self.store = True
            self.data = R[0] if op.startswith("buffer") else R[1]
        elif op.startswith("ds_read") or op.startswith("ds_swizzle") or op.startswith("ds_bpermute"):
            self.kind = "lds"; self.dst = R[0]; self.src = flat(R[1:])
        elif op.startswith("ds_write"):
            self.kind = "lds"; self.src = flat(R)
        elif op.startswith("s_load") or op.startswith("s_memtime") or op.startswith("s_memrealtime"):
            self.kind = "smem"; self.dst = R[0]; self.src = flat(R[1:])
        elif op.startswith("v_mfma"):
            self.kind = "mfma"; self.dst = R[0]; self.srcA, self.srcB, self.srcC = R[1], R[2], R[3]; self.src = flat(R[1:])
        elif op.startswith("v_"):
            self.kind = "valu"
            if op.startswith("v_permlane") and "swap" in op: self.dst = flat(R); self.src = flat(R)
            elif op.startswith("v_add_co") or op.startswith("v_sub_co") or op.startswith("v_addc_co"):
                self.dst = R[0] + R[1]; self.src = flat(R[2:])
            else:
                self.dst = list(R[0]); self.src = flat(R[1:])
                if op.startswith("v_fmac") or op.startswith("v_dot2c") or op.startswith("v_writelane"): self.src += R[0]
                if op.startswith("v_cmpx"): self.dst += ["exec_lo", "exec_hi"]
                if op.startswith("v_cndmask") and len(ops) == 3: self.src += ["vcc_lo", "vcc_hi"]
        elif op.startswith("s_"):
            self.kind = "salu"
            if op.startswith(NODST_S): self.src = flat(R)
            else:
                self.dst = list(R[0]); self.src = flat(R[1:])
                if "saveexec" in op: self.dst += ["exec_lo", "exec_hi"]
        self.is_trans = op.startswith(TRANS)
        self.is_dpp = "_dpp" in op or "row_" in mods or "quad_perm" in mods
        self.is_dot = op.startswith("v_dot2")
    def weight(self):
        if self.raw: return 0
        if self.op == "s_nop": return int(self.text.split()[1]) + 1
        return 1

def hazard(p, c):
    need = 0
    pd = set(p.dst)
    if p.kind == "valu":
        vd = {r for r in pd if r[0] in "va" and not r.startswith("vcc")}
        sd = pd - vd
        if vd:
            if c.kind == "mfma" and vd & set(c.src): need = max(need, 2)
            if c.kind == "valu" and vd & set(c.src):
                if c.is_dpp or c.op.startswith("v_permlane"): need = max(need, 2)
                if c.op.startswith("v_readlane") or c.op.startswith("v_readfirstlane"): need = max(need, 1)
                if p.is_trans: need = max(need, 1)
            if p.is_trans and c.kind in ("vmem", "lds") and vd & set(c.src): need = max(need, 1)
            if p.is_dot and (vd & (set(c.src) | set(c.dst))):
                if c.op == p.op and c.kind == "valu":
                    ab = set(c.src) - (set(c.dst) if c.op.startswith("v_dot2c") else set())
                    toks = [o.strip() for o in c.text.split(";")[0].split(None, 1)[1].split(",")]
                    ab = set(regs_of(toks[1]) + regs_of(toks[2].split()[0]))
                    if vd & ab: need = max(need, 3)
                else: need = max(need, 3)
        if sd:
            ex = {"exec_lo", "exec_hi"} & sd
            if c.kind == "valu" and (sd - ex) & set(c.src): need = max(need, 4 if c.op.startswith(("v_readlane", "v_writelane")) else 2)
            if c.kind == "vmem" and sd & set(c.src): need = max(need, 5)
            if ex:
                if c.kind == "mfma": need = max(need, 4)
                if c.kind == "valu" and (c.is_dpp): need = max(need, 5)
                if c.kind == "valu" and c.op.startswith(("v_readlane", "v_readfirstlane", "v_permlane", "v_writelane")): need = max(need, 4)
            if c.kind == "salu" and sd & set(c.src): need = max(need, 1)
            if c.op.startswith("s_cbranch_vcc") and "vcc_lo" in sd: need = max(need, 2)
    if p.kind == "mfma":
        P = 8 if "32x32" in p.op else 4
        big = {4: 8, 8: 12}[P]
        if c.kind == "mfma":
            if pd & (set(c.srcA) | set(c.srcB)): need = max(need, big)
            if pd & set(c.srcC) and not (c.srcC == p.dst and c.op == p.op): need = max(need, big - 2)
            if pd & set(c.dst) and not (c.srcC == p.dst): need = max(need, big - 2)
        elif c.kind in ("valu", "vmem", "lds"):
            if pd & (set(c.src) | set(c.dst)): need = max(need, big)
        if c.kind == "valu" and set(p.srcC) & set(c.dst): need = max(need, P - 1)
    if p.kind == "salu" and "m0" in pd and getattr(c, "dma", False): need = max(need, 1)
    if getattr(p, "store", False) and len(p.data) >= 3 and set(p.data) & set(c.dst):
        need = max(need, 2 if c.kind == "valu" else 1)
    return need

class Kernel:
    def __init__(self, name):
        self.name = name; self.ins = []; self.blk = None; self.nblk = 0; self.nlabel = 0
    def __call__(self, text, tag=None):
        for line in text.strip().split("\n"):
            line = line.strip()
            if not line or line.startswith(";"): continue
            self.ins.append(Inst(line, self.blk, tag))
    def label(self, name): self.ins.append(Inst(name + ":", self.blk, raw=True))
    def newlabel(self, s="L"):
        self.nlabel += 1; return f"{self.name}_{s}{self.nlabel}"
    def mark(self, what, **kw):
        i = Inst("", self.blk, raw=True); i.pseudo = what; i.kw = kw; self.ins.append(i)
    def wait_tag(self, tag): self.mark("wait_tag", tag=tag)
    def wait_lds(self): self.mark("wait_lds")
    def wait_vm_all(self): self.mark("wait_vm_all")
    @contextlib.contextmanager
    def capture(self):
        saved = self.ins; self.ins = []; box = []
        try: yield box
        finally:
            box.extend(self.ins); self.ins = saved
    def extend(self, L): self.ins.extend(L)
    @contextlib.contextmanager
    def skippable(self, branch):
        lab = self.newlabel("skip")
        self(f"{branch} {lab}")
        self.nblk += 1; old = self.blk; self.blk = self.nblk
        self.mark("blk_begin")
        try: yield
        finally:
            self.mark("blk_end"); self.blk = old
            self.label(lab)
    def dual(self, flag, texts, suffix, tag=None):
        l1 = self.newlabel("d"); l2 = self.newlabel("d")
        grp = []
        with self.capture() as box:
            self(f"s_cmp_lg_u32 {flag}, 0")
            self(f"s_cbranch_scc0 {l1}")
            for t in texts:
                self(t, tag); self.ins[-1].zero_w = True
            self(f"s_branch {l2}"); self.ins[-1].zero_w = True
            self.label(l1)
            for t in texts:
                self(t + " " + suffix); self.ins[-1].ghost = True; self.ins[-1].zero_w = True
            self.label(l2)
        for x in box[:-1]: x.glue = True
        self.extend(box)

    def pass_wait(self):
        out = []; vm = []; lg = []; stack = []
        def wait_vm(n):
            n = min(n, 63)
            if len(vm) > n:
                out.append(Inst(f"s_waitcnt vmcnt({n})", blk)); del vm[:len(vm) - n]
        def wait_lg(n):
            if any(x.kind == "smem" for x in lg): n = 0
            n = min(n, 15)
            if len(lg) > n:
                out.append(Inst(f"s_waitcnt lgkmcnt({n})", blk)); del lg[:len(lg) - n]
        for i in self.ins:
            blk = i.blk
            ps = getattr(i, "pseudo", None)
            if ps == "blk_begin": stack.append((list(vm), list(lg))); continue
            if ps == "blk_end":
                v0, l0 = stack.pop()
                if any(x not in v0 for x in vm): wait_vm(0)
                if any(x not in l0 for x in lg): wait_lg(0)
                vm[:] = v0; lg[:] = l0; continue
            if ps == "wait_tag":
                idx = [k for k, x in enumerate(vm) if x.tag == i.kw["tag"]]
                if idx: wait_vm(len(vm) - 1 - idx[-1])
                continue
            if ps == "wait_lds": wait_lg(0); continue
            if ps == "touch":
                touched = set(i.kw["regs"])
                idx = [k for k, x in enumerate(vm) if set(x.dst) & touched]
                if idx: wait_vm(len(vm) - 1 - idx[-1])
                idx = [k for k, x in enumerate(lg) if set(x.dst) & touched]
                if idx: wait_lg(len(lg) - 1 - idx[-1])
                continue
            if ps == "wait_vm_all": wait_vm(0); continue
            if ps == "reset": vm.clear(); lg.clear(); continue
            if i.raw: out.append(i); continue
            if i.op == "s_waitcnt":
                m = re.search(r"vmcnt\((\d+)\)", i.text)
                if m and len(vm) > int(m.group(1)): del vm[:len(vm) - int(m.group(1))]
                m = re.search(r"lgkmcnt\((\d+)\)", i.text)
                if m and len(lg) > int(m.group(1)): del lg[:len(lg) - int(m.group(1))]
                out.append(i); continue
            touched = set(i.src) | set(i.dst)
            if not getattr(i, "ghost", False):
                idx = [k for k, x in enumerate(vm) if set(x.dst) & touched]
                if idx: wait_vm(len(vm) - 1 - idx[-1])
                idx = [k for k, x in enumerate(lg) if set(x.dst) & touched]
                if idx: wait_lg(len(lg) - 1 - idx[-1])
            if i.kind in ("lds", "smem") and len(lg) >= 14: wait_lg(12)
            if i.kind == "vmem" and len(vm) >= 63 and not getattr(i, "ghost", False): wait_vm(62)
            out.append(i)
            if getattr(i, "ghost", False): continue
            if i.kind == "vmem":
                vm.append(i)
                assert len(vm) <= 63, "too many outstanding vmem ops"
            elif i.kind in ("lds", "smem"):
                lg.append(i)
                if i.kind == "smem" and not i.op == "s_load_dword": lg.append(i)
        self.ins = out
    def pass_hazard(self):
        out = []
        for c in self.ins:
            if not c.raw:
                need = 0; dist = 0
                for p in reversed(out[-60:]):
                    if not p.raw:
                        h = hazard(p, c)
                        if h - dist > need: need = h - dist
                    w = p.weight()
                    if getattr(p, "zero_w", False) or (p.blk is not None and p.blk != c.blk): w = 0
                    dist += w
                    if dist >= 12: break
                while need > 0:
                    n = min(need, 16); out.append(Inst(f"s_nop {n-1}", c.blk)); need -= n
            out.append(c)
        self.ins = out
    def text(self):
        self.pass_wait(); self.pass_hazard()
        L = [f".text\n.globl {self.name}\n.p2align 8\n.type {self.name},@function\n{self.name}:"]
        for i in self.ins:
            if i.raw and not i.text: continue
            L.append(i.text if i.raw else "  " + i.text)
        return "\n".join(L)

def interleave(main, fill, every=1, per=1, start=0, only=None):
    out = []; f = list(fill); n = 0
    for k, i in enumerate(main):
        out.append(i)
        if i.raw or getattr(i, "glue", False) or (only and i.kind != only): continue
        n += 1
        if n > start and (n - start) % every == 0:
            took = 0
            while f and took < per:
                x = f.pop(0); out.append(x)
                while getattr(x, "glue", False):
                    x = f.pop(0); out.append(x)
                if not x.raw: took += 1
    out.extend(f)
    return out

def kd(name, vgpr, accum, sgpr=96):
    return f""".p2align 6
.amdhsa_kernel {name}
  .amdhsa_next_free_vgpr {vgpr}
  .amdhsa_next_free_sgpr {sgpr}
  .amdhsa_accum_offset {accum}
  .amdhsa_group_segment_fixed_size 0
  .amdhsa_kernarg_size 88
  .amdhsa_user_sgpr_count 2
  .amdhsa_user_sgpr_kernarg_segment_ptr 1
  .amdhsa_system_sgpr_workgroup_id_x 1
.end_amdhsa_kernel"""
```

```python
import sys
from asmgen import *
MB = 1 << 20; KB = 1024
WS_Z, WS_WT, WS_ZP = 0, 2*MB, 4*MB
WS_W1P, WS_W2P = 6*MB, 8*MB
WS_LN2, WS_HH = 10*MB, 12*MB
WS_HID = 14*MB
WS_WB = 20*MB
WS_FL = 21*MB
WS_DBG = 24*MB
W_BYTES = 1376*KB

def srd(k, R, lo, hi, size, add=0):
    if add:
        k(f"s_add_u32 s{R}, s{lo}, {add}\ns_addc_u32 s{R+1}, s{hi}, 0")
    else:
        k(f"s_mov_b32 s{R}, s{lo}\ns_mov_b32 s{R+1}, s{hi}")
    k(f"s_mov_b32 s{R+2}, {size}\ns_mov_b32 s{R+3}, 0x20000")

def item_id(k, dst, t0):
    k(f"""s_and_b32 s{dst}, s2, 7
    s_lshl_b32 s{dst}, s{dst}, 2
    s_lshr_b32 s{t0}, s2, 6
    s_add_u32 s{dst}, s{dst}, s{t0}
    s_lshl_b32 s{dst}, s{dst}, 3
    s_bfe_u32 s{t0}, s2, 0x30003
    s_add_u32 s{dst}, s{dst}, s{t0}""")

def gen_k1(k2_label="k2_kernel", k2_bytes=0):
    k = Kernel("k1_kernel")
    k(f"s_cmp_ge_u32 s2, 256\ns_cbranch_scc1 k1_end")
    k("""s_load_dwordx4 s[4:7], s[0:1], 0
    s_load_dwordx2 s[8:9], s[0:1], 16
    s_load_dwordx2 s[12:13], s[0:1], 32
    s_load_dwordx2 s[16:17], s[0:1], 48
    s_load_dwordx2 s[20:21], s[0:1], 80
    v_lshrrev_b32 v1, 6, v0
    v_and_b32 v0, 63, v0
    v_readfirstlane_b32 s3, v1""")
    item_id(k, 22, 23)
    k("s_cmp_ge_u32 s3, 4\ns_cbranch_scc1 k1_extras")
    LX, LT, LR = 0, 8192, 8192 + 16*528
    k("""s_bfe_u32 s24, s22, 0x20004
    s_lshl_b32 s24, s24, 9
    s_and_b32 s25, s22, 15
    s_lshl_b32 s25, s25, 3
    s_add_u32 s24, s24, s25
    s_lshr_b32 s25, s22, 6
    s_lshl_b32 s25, s25, 1
    s_add_u32 s24, s24, s25
    s_lshr_b32 s25, s3, 1
    s_add_u32 s24, s24, s25
    s_and_b32 s25, s3, 1
    s_lshl_b32 s25, s25, 8
    s_add_u32 s24, s24, s25
    s_lshl_b32 s24, s24, 10
    s_add_u32 s25, s24, 131072
    s_lshl_b32 s26, s3, 11
    v_lshlrev_b32 v2, 4, v0
    s_waitcnt lgkmcnt(0)""")
    srd(k, 28, 4, 5, 2*MB)
    k("s_mov_b32 m0, s26")
    k("buffer_load_dwordx4 v2, s[28:31], s24 offen lds", tag="x")
    k("s_add_u32 m0, s26, 1024")
    k("buffer_load_dwordx4 v2, s[28:31], s25 offen lds", tag="x")
    srd(k, 32, 20, 21, 2*MB, WS_Z)
    k("""v_and_b32 v3, 15, v0
    v_lshrrev_b32 v4, 4, v0
    v_cvt_f32_u32 v5, v3
    v_lshlrev_b32 v7, 2, v4
    v_cvt_f32_u32 v6, v7""")
    k(f"""v_mul_f32 v8, {f2h(1/32)}, v5
    v_cmp_eq_u32 vcc, 0, v3
    v_mov_b32 v9, 0.5
    v_cndmask_b32 v9, v8, v9, vcc
    v_mov_b32 v10, {f2h(0.25)}
    v_cndmask_b32 v10, v10, 0, vcc
    v_mov_b32 v11, {f2h(1/16)}
    v_cndmask_b32 v11, 0, v11, vcc""")
    for jp in range(4):
        for q in range(2):
            j = 2*jp + q
            off = float((j & 3) + 16*(j >> 2))
            k(f"""v_add_f32 v12, {f2h(off)}, v6
            v_mul_f32 v{24+q}, v12, v8
            v_fma_f32 v{26+q}, v12, v9, v10
            v_cos_f32 v{24+q}, v{24+q}
            v_cos_f32 v{26+q}, v{26+q}""")
        k(f"v_cvt_pk_bf16_f32 v{16+jp}, v24, v25\nv_cvt_pk_bf16_f32 v{20+jp}, v26, v27")
    k(f"""s_lshl_b32 s27, s3, 2
    v_cvt_f32_u32 v13, s27
    v_fmac_f32 v13, {f2h(32.0)}, v5
    v_mul_f32 v13, {f2h(1/512)}, v13
    v_cmp_lt_u32 vcc, 7, v3
    v_mov_b32 v14, 0x80008000
    v_cndmask_b32 v14, 0, v14, vcc""")
    for n in range(4):
        k(f"v_add_f32 v15, {f2h(n/512)}, v13")
        for r in range(4):
            k(f"""v_add_f32 v12, {f2h(float(r))}, v6
            v_mul_f32 v24, v12, v15
            v_cos_f32 v25, v24
            v_sin_f32 v26, v24
            v_cvt_pk_bf16_f32 v{32+8*n+r}, v25, v26
            v_cvt_pk_bf16_f32 v{36+8*n+r}, -v26, v25
            v_xor_b32 v{36+8*n+r}, v14, v{36+8*n+r}""")
    k("s_cmp_lg_u32 s3, 0")
    with k.skippable("s_cbranch_scc1"):
        k(f"""v_cmp_lt_u32 vcc, 7, v3
        v_mul_f32 v15, {f2h(32/512)}, v5
        v_mov_b32 v24, {f2h(240/512)}
        v_cndmask_b32 v24, 0, v24, vcc
        v_sub_f32 v15, v15, v24
        v_mov_b32 v27, 0xffff
        v_mov_b32 v28, 0xffff0000
        v_cndmask_b32 v27, v27, v28, vcc
        v_cmp_eq_u32 vcc, 0, v3""")
        for r in range(4):
            k(f"""v_add_f32 v12, {f2h(float(r))}, v6
            v_mul_f32 v24, v12, v15
            v_cos_f32 v25, v24
            v_sin_f32 v26, v24
            v_mov_b32 v28, {'1.0' if r & 1 else '-1.0'}
            v_cndmask_b32 v26, v26, v28, vcc
            v_cvt_pk_bf16_f32 v{32+r}, v25, v25
            v_cvt_pk_bf16_f32 v{36+r}, -v26, -v26
            v_and_b32 v{32+r}, v27, v{32+r}
            v_and_b32 v{36+r}, v27, v{36+r}""")
    for r in range(64, 80): k(f"v_mov_b32 v{r}, 0")
    k(f"""v_lshlrev_b32 v80, 3, v0
    v_add_u32 v80, s26, v80
    v_mul_u32_u24 v81, 528, v3
    v_lshl_add_u32 v81, v4, 7, v81
    s_lshl_b32 s36, s3, 5
    s_add_u32 s36, s36, {LT}
    v_add_u32 v81, s36, v81
    v_and_b32 v82, 7, v0
    v_lshlrev_b32 v82, 4, v82
    v_lshl_add_u32 v82, v4, 7, v82
    s_mul_i32 s36, s3, {4*528}
    s_add_u32 s36, s36, {LT}
    v_add_u32 v82, s36, v82
    v_and_b32 v83, 1, v4
    v_lshlrev_b32 v84, 2, v83
    s_lshl_b32 s36, s3, 3
    s_add_u32 s36, s36, {LR}
    v_add_u32 v84, s36, v84
    v_lshlrev_b32 v83, 4, v83
    v_lshrrev_b32 v85, 1, v4
    v_lshlrev_b32 v85, 17, v85
    v_lshrrev_b32 v86, 2, v3
    v_lshl_add_u32 v85, v86, 15, v85
    v_and_b32 v86, 3, v3
    v_lshl_add_u32 v85, v86, 5, v85
    v_add_u32 v85, v85, v83
    v_add_u32 v83, {LR}, v83
    s_lshl_b32 s37, s3, 19
    s_lshl_b32 s36, s22, 7
    s_add_u32 s37, s37, s36
    s_add_u32 s38, s37, {2*131072}
    v_mov_b32 v87, 0x3f803f80
    s_mov_b32 s40, 0x00ff00ff
    s_mov_b32 s41, 0x00ff00ff
    s_not_b64 s[42:43], s[40:41]""")
    k.wait_tag("x")
    k("""ds_read_b64_tr_b16 v[88:89], v80
    ds_read_b64_tr_b16 v[90:91], v80 offset:512
    ds_read_b64_tr_b16 v[92:93], v80 offset:1024
    ds_read_b64_tr_b16 v[94:95], v80 offset:1536
    v_mov_b32 v24, 0
    v_mov_b32 v25, 0
    v_mov_b32 v26, 0
    v_mov_b32 v27, 0
    v_mfma_f32_16x16x32_bf16 v[96:99], v[88:91], v[16:19], 0
    v_mfma_f32_16x16x32_bf16 v[100:103], v[88:91], v[20:23], 0""")
    for j in range(4):
        k(f"v_dot2c_f32_bf16 v24, v{88+j}, v87\nv_dot2c_f32_bf16 v25, v{88+j}, v{88+j}")
    k("""v_mfma_f32_16x16x32_bf16 v[104:107], v[92:95], v[16:19], 0
    v_mfma_f32_16x16x32_bf16 v[108:111], v[92:95], v[20:23], 0""")
    for j in range(4):
        k(f"v_dot2c_f32_bf16 v26, v{92+j}, v87\nv_dot2c_f32_bf16 v27, v{92+j}, v{92+j}")
    k("""v_permlane32_swap_b32 v24, v25
    v_add_f32 v24, v24, v25
    v_permlane32_swap_b32 v26, v27
    v_add_f32 v26, v26, v27
    v_permlane16_swap_b32 v24, v26
    v_add_f32 v24, v24, v26""")
    for sh in (8, 4, 2, 1):
        k(f"v_add_f32_dpp v24, v24, v24 row_ror:{sh} row_mask:0xf bank_mask:0xf")
    k("""v_readlane_b32 s44, v24, 0
    v_readlane_b32 s45, v24, 16
    v_mov_b32 v25, v24""")
    for r in range(4): k(f"v_fma_f32 v{96+r}, -v11, s44, v{96+r}")
    k("v_permlane32_swap_b32 v24, v25")
    for r in range(4): k(f"v_cvt_pk_bf16_f32 v{88+r}, v{96+r}, v{100+r}")
    k("ds_write_b128 v81, v[88:91]")
    for r in range(4): k(f"v_fma_f32 v{104+r}, -v11, s45, v{104+r}")
    k(f"""v_mul_f32 v24, {f2h(1/512)}, v24
    v_mul_f32 v25, {f2h(1/512)}, v25""")
    for r in range(4): k(f"v_cvt_pk_bf16_f32 v{92+r}, v{104+r}, v{108+r}")
    k("ds_write_b128 v81, v[92:95] offset:16")
    k(f"""v_fma_f32 v25, -v24, v24, v25
    v_max_f32 v25, 0, v25
    v_add_f32 v25, {f2h(1e-5)}, v25
    v_rsq_f32 v25, v25
    ds_write_b32 v84, v25""")
    k.wait_lds()
    k("s_barrier")
    k(f"""s_mov_b64 exec, s[40:41]
    ds_read_b128 v[64:67], v82
    ds_read_b128 v[72:75], v82 offset:{2*528}
    s_mov_b64 exec, s[42:43]
    ds_read_b128 v[68:71], v82 offset:528
    ds_read_b128 v[76:79], v82 offset:{3*528}
    s_mov_b64 exec, -1
    ds_read_b128 v[28:31], v83""")
    for p in range(2):
        for part in range(2):
            d = 96 + 8*p + 4*part
            k(f"v_mfma_f32_16x16x32_bf16 v[{d}:{d+3}], v[{64+8*p}:{67+8*p}], v[{32+16*p+4*part}:{35+16*p+4*part}], 0")
    for p in range(2):
        for part in range(2):
            d = 96 + 8*p + 4*part
            k(f"v_mfma_f32_16x16x32_bf16 v[{d}:{d+3}], v[{68+8*p}:{71+8*p}], v[{40+16*p+4*part}:{43+16*p+4*part}], v[{d}:{d+3}]")
    for p in range(2):
        d = 96 + 8*p
        for q in range(4):
            k(f"v_pk_mul_f32 v[{d+2*q}:{d+2*q+1}], v[{d+2*q}:{d+2*q+1}], v[{28+2*(q&1)}:{29+2*(q&1)}]")
        for r in range(4):
            k(f"v_cvt_pk_bf16_f32 v{88+4*p+r}, v{d+r}, v{d+4+r}")
        k(f"buffer_store_dwordx4 v[{88+4*p}:{91+4*p}], v85, s[32:35], s{37+p} offen")
    k("s_endpgm")
    k.label("k1_extras")
    k.mark("reset")
    k("""s_sub_u32 s3, s3, 4
    s_lshl_b32 s24, s3, 6
    v_add_u32 v1, s24, v0
    s_waitcnt lgkmcnt(0)""")
    srd(k, 28, 6, 7, 2048*514)
    srd(k, 32, 8, 9, 2048*514)
    srd(k, 36, 20, 21, 32*MB)
    k(f"""v_lshrrev_b32 v2, 4, v1
    v_and_b32 v3, 15, v1
    v_lshl_add_u32 v4, v3, 5, v2
    v_sub_u32 v5, 512, v4
    v_subrev_u32 v6, 240, v4
    v_cmp_eq_u32 vcc, 0, v2
    v_cndmask_b32 v5, v5, v6, vcc
    v_cmp_lt_u32 vcc, 7, v3
    v_cndmask_b32 v4, v4, v5, vcc
    v_lshlrev_b32 v4, 1, v4
    s_and_b32 s25, s22, 15
    s_lshr_b32 s26, s22, 6
    s_lshl_b32 s26, s26, 6
    s_add_u32 s25, s25, s26
    s_bfe_u32 s26, s22, 0x20004
    s_lshl_b32 s26, s26, 9
    s_add_u32 s25, s25, s26
    s_mul_i32 s26, s25, 514""")
    for r in range(4):
        for e in range(2):
            n = 2*r + e
            k(f"s_add_u32 s27, s26, {(16*r + 256*e)*514}")
            k(f"buffer_load_ushort v{16+n}, v4, s[28:31], s27 offen\nbuffer_load_ushort v{24+n}, v4, s[32:35], s27 offen")
    k(f"""s_lshl_b32 s40, s2, 2
    s_add_u32 s40, s40, s3
    s_cmp_ge_u32 s40, 696
    s_cselect_b32 s41, 1, 0
    s_cselect_b32 s40, 0, s40
    v_lshrrev_b32 v5, 3, v0
    v_and_b32 v6, 7, v0
    v_lshlrev_b32 v6, 4, v6
    s_cmp_ge_u32 s40, 352
    s_cbranch_scc1 k1_w2unit""")
    srd(k, 44, 12, 13, W_BYTES)
    srd(k, 48, 20, 21, W_BYTES, WS_W1P)
    k(f"""v_lshrrev_b32 v7, 1, v5
    v_and_b32 v5, 1, v5
    v_lshl_add_u32 v5, v7, 4, v5
    v_mul_u32_u24 v5, 2752, v5
    s_and_b32 s52, s40, 15
    s_lshr_b32 s53, s40, 4
    s_and_b32 s54, s52, 1
    s_lshl_b32 s54, s54, 8
    s_and_b32 s55, s52, 14
    s_add_u32 s54, s54, s55
    s_mul_i32 s54, s54, 2752
    s_lshl_b32 s55, s53, 7
    s_add_u32 s54, s54, s55
    s_mov_b32 s55, {64*2752}
    s_lshl_b32 s56, s53, 16
    s_lshl_b32 s57, s52, 10
    s_add_u32 s56, s56, s57
    s_mov_b32 s57, 16384
    s_branch k1_unit""")
    k.label("k1_w2unit")
    srd(k, 44, 16, 17, W_BYTES)
    srd(k, 48, 20, 21, W_BYTES, WS_W2P)
    k(f"""v_lshrrev_b32 v7, 2, v5
    v_and_b32 v5, 3, v5
    v_lshl_add_u32 v5, v7, 4, v5
    v_lshlrev_b32 v5, 10, v5
    s_sub_u32 s40, s40, 352
    s_and_b32 s52, s40, 7
    s_lshr_b32 s53, s40, 3
    s_lshl_b32 s54, s53, 15
    s_lshl_b32 s55, s52, 7
    s_add_u32 s54, s54, s55
    s_mov_b32 s55, 4096
    s_mul_i32 s56, s52, 43
    s_add_u32 s56, s56, s53
    s_lshl_b32 s56, s56, 12
    s_mov_b32 s57, 1024""")
    k.label("k1_unit")
    LP = 20480
    k(f"""v_add_u32 v5, v5, v6
    s_lshl_b32 s58, s3, 12
    s_add_u32 s58, s58, {LP}
    s_cmp_lg_u32 s41, 0
    s_cselect_b32 s56, 0x7ff00000, s56""")
    for m in range(4):
        k(f"s_add_u32 m0, s58, {1024*m}")
        k(f"buffer_load_dwordx4 v5, s[44:47], s54 offen lds", tag="pp")
        if m < 3: k("s_add_u32 s54, s54, s55")
    k(f"""v_mov_b32 v8, -1
    v_mov_b32 v9, -1
    v_mov_b32 v10, -1
    v_mov_b32 v11, -1
    v_lshlrev_b32 v7, 4, v1
    s_lshl_b32 s27, s2, 13
    s_add_u32 s27, s27, {WS_ZP}
    buffer_store_dwordx4 v[8:11], v7, s[36:39], s27 offen
    s_add_u32 s27, s27, 4096
    buffer_store_dwordx4 v[8:11], v7, s[36:39], s27 offen
    v_mov_b32 v12, 0
    v_lshlrev_b32 v13, 2, v1
    v_cmp_gt_u32 vcc, 32, v1
    v_mov_b32 v14, 0x7ff00000
    v_cndmask_b32 v13, v14, v13, vcc
    s_lshl_b32 s27, s2, 7
    s_add_u32 s27, s27, {WS_FL}
    buffer_store_dword v12, v13, s[36:39], s27 offen""")
    if k2_bytes:
        k(f"""s_getpc_b64 s[60:61]""")
        k.label("k1_pc")
        k(f"""s_add_u32 s60, s60, {k2_label}-k1_pc
        s_addc_u32 s61, s61, 0
        v_lshlrev_b32 v15, 7, v1""")
        for j in range((k2_bytes + 32767)//32768):
            k(f"v_min_u32 v14, {k2_bytes - 4}, v15\nglobal_load_dword v40, v14, s[60:61]\nv_add_u32 v15, 32768, v15")
    k(f"""v_lshrrev_b32 v41, 1, v0
    v_and_b32 v42, 1, v0
    v_lshlrev_b32 v41, 4, v41
    v_lshl_add_u32 v41, v42, 8, v41
    v_add_u32 v41, s25, v41
    v_sub_u32 v42, 2048, v41
    v_and_b32 v42, 2047, v42
    v_mul_u32_u24 v41, 514, v41
    v_mul_u32_u24 v42, 514, v42
    v_cmp_gt_u32 vcc, 8, v1
    v_mov_b32 v14, 0x7ff00000
    v_cndmask_b32 v41, v14, v41, vcc
    v_cndmask_b32 v42, v14, v42, vcc
    buffer_load_ushort v44, v41, s[28:31], 0 offen
    buffer_load_ushort v45, v41, s[32:35], 0 offen
    buffer_load_ushort v46, v41, s[28:31], 0 offen offset:512
    buffer_load_ushort v47, v41, s[32:35], 0 offen offset:512
    buffer_load_ushort v48, v42, s[28:31], 0 offen
    buffer_load_ushort v49, v42, s[32:35], 0 offen
    buffer_load_ushort v50, v42, s[28:31], 0 offen offset:512
    buffer_load_ushort v51, v42, s[32:35], 0 offen offset:512""")
    k(f"""v_lshrrev_b32 v2, 2, v1
    v_lshlrev_b32 v2, 15, v2
    v_and_b32 v3, 3, v1
    v_lshl_add_u32 v2, v3, 5, v2
    v_cmp_ne_u32 vcc, 0, v1
    v_cndmask_b32 v2, v14, v2, vcc
    s_lshl_b32 s27, s22, 7
    s_add_u32 s27, s27, {WS_WT}""")
    for n in range(8): k(f"v_lshl_or_b32 v{16+n}, v{24+n}, 16, v{16+n}")
    k("buffer_store_dwordx4 v[16:19], v2, s[36:39], s27 offen\nbuffer_store_dwordx4 v[20:23], v2, s[36:39], s27 offen offset:16")
    k(f"""v_lshrrev_b32 v5, 4, v0
    v_lshlrev_b32 v5, 10, v5
    v_bfe_u32 v6, v0, 2, 2
    v_lshl_add_u32 v5, v6, 7, v5
    v_and_b32 v6, 3, v0
    v_lshl_add_u32 v5, v6, 3, v5
    v_add_u32 v5, s58, v5
    v_lshlrev_b32 v6, 4, v0""")
    k.wait_tag("pp")
    for t in range(4):
        k(f"ds_read_b64_tr_b16 v[{56+4*t}:{57+4*t}], v5 offset:{32*t}\nds_read_b64_tr_b16 v[{58+4*t}:{59+4*t}], v5 offset:{32*t+512}")
    for t in range(4):
        k(f"buffer_store_dwordx4 v[{56+4*t}:{59+4*t}], v6, s[48:51], s56 offen")
        if t < 3: k("s_add_u32 s56, s56, s57")
    for n in range(8): k(f"v_lshlrev_b32 v{44+n}, 16, v{44+n}")
    k(f"""v_add_f32 v44, v44, v48
    v_sub_f32 v45, v45, v49
    v_add_f32 v46, v46, v50
    v_sub_f32 v47, v47, v51
    v_add_f32 v48, v44, v46
    v_add_f32 v49, v45, v47
    v_sub_f32 v50, v44, v46
    v_sub_f32 v51, v45, v47
    v_mul_f32 v48, {f2h(0.25)}, v48
    v_mul_f32 v49, {f2h(0.25)}, v49
    v_mul_f32 v50, {f2h(0.25)}, v50
    v_mul_f32 v51, {f2h(0.25)}, v51
    v_cvt_pk_bf16_f32 v48, v48, v49
    v_cvt_pk_bf16_f32 v50, v50, v51
    v_lshlrev_b32 v41, 2, v1
    v_cmp_gt_u32 vcc, 8, v1
    v_cndmask_b32 v41, v14, v41, vcc
    buffer_store_dword v48, v41, s[36:39], s27 offen
    s_lshl_b32 s27, s22, 5
    s_add_u32 s27, s27, {WS_WB}
    buffer_store_dword v50, v41, s[36:39], s27 offen""")
    k.label("k1_end")
    k("s_endpgm")
    return k

if __name__ == "__main__":
    which = sys.argv[1] if len(sys.argv) > 1 else "k1"
    if which == "k1":
        k1 = gen_k1()
        print("; @launch kernel=k1_kernel grid=(256,1,1) block=(512,1,1) lds=36864")
        print('.amdgcn_target "amdgcn-amd-amdhsa--gfx950"')
        print(k1.text())
        print('.section .rodata,"a"')
        print(kd("k1_kernel", 112, 112))
```

```python
from asmgen import *
from gen import *

OOB = 0x7ff00000
LB1, LB2, LSP, LC, LST, LH, LRD = 0, 8192, 16384, 32768, 40960, 65536, 0
K2_LDS = 131072
MF = "v_mfma_f32_16x16x32_bf16"; MF16 = "v_mfma_f32_16x16x16_bf16"
def R(b, n=4, f="v"): return f"{f}[{b}:{b+n-1}]"

def gen_k2(diag=False, opt=None):
    opt = opt or {}
    k = Kernel("k2_kernel")
    slow = []
    nst = [0]
    def stamp():
        if diag:
            k(f"s_memtime s[{72+2*nst[0]}:{73+2*nst[0]}]"); k.ins[-1].kind = "salu"; nst[0] += 1
    def poll(loads, check, name):
        k(check)
        k(f"s_cbranch_vccnz {name}_retry")
        k.label(f"{name}_ok")
        slow.append((name, loads, check))
    k("s_cmp_ge_u32 s2, 256\ns_cbranch_scc1 k2_end")
    stamp()
    k("""s_load_dwordx2 s[4:5], s[0:1], 0
    s_load_dwordx2 s[6:7], s[0:1], 40
    s_load_dwordx4 s[8:11], s[0:1], 56
    s_load_dwordx2 s[20:21], s[0:1], 80
    v_lshrrev_b32 v1, 6, v0
    v_mov_b32 v2, v0
    v_and_b32 v0, 63, v0
    v_readfirstlane_b32 s3, v1
    s_getreg_b32 s71, hwreg(HW_REG_XCC_ID)""")
    item_id(k, 22, 23)
    k(f"""s_lshr_b32 s23, s22, 3
    s_and_b32 s24, s22, 7
    s_and_b32 s71, s71, 15
    s_or_b32 s71, s71, 0x80
    v_lshlrev_b32 v3, 7, v2
    s_lshr_b32 s25, s22, 2
    s_lshl_b32 s25, s25, 15
    s_and_b32 s26, s22, 3
    s_lshl_b32 s26, s26, 5
    s_add_u32 s25, s25, s26
    s_add_u32 s26, s25, {WS_WT}
    v_lshlrev_b32 v4, 5, v2
    v_and_b32 v8, 15, v0
    v_lshrrev_b32 v9, 4, v0
    v_and_b32 v10, 7, v0
    v_bfe_u32 v11, v0, 3, 1
    v_lshlrev_b32 v12, 4, v0
    v_add_u32 v13, 4096, v12
    v_add_u32 v14, 8192, v12
    v_add_u32 v15, 12288, v12""")
    k(f"""v_and_b32 v5, 3, v10
    v_lshlrev_b32 v5, 7, v5
    v_lshrrev_b32 v6, 2, v10
    v_add_u32 v5, v5, v6
    v_lshlrev_b32 v5, 10, v5
    v_lshl_add_u32 v5, v9, 7, v5
    v_lshl_add_u32 v5, v11, 2, v5
    s_bfe_u32 s27, s22, 0x20004
    s_lshl_b32 s27, s27, 9
    s_and_b32 s56, s22, 15
    s_lshl_b32 s56, s56, 3
    s_add_u32 s27, s27, s56
    s_lshr_b32 s56, s22, 6
    s_lshl_b32 s56, s56, 1
    s_add_u32 s27, s27, s56
    s_lshl_b32 s27, s27, 10
    s_lshl_b32 s56, s3, 3
    s_add_u32 s27, s27, s56
    v_cmp_eq_u32 vcc, 0, v2
    v_mov_b32 v6, {OOB}
    v_cndmask_b32 v6, v6, 0, vcc
    v_mov_b32 v7, s71
    s_lshl_b32 s57, s23, 10
    s_add_u32 s57, s57, {WS_FL}
    s_lshl_b32 s56, s24, 2
    s_add_u32 s56, s56, s57
    s_waitcnt lgkmcnt(0)""")
    srd(k, 28, 20, 21, 32*MB)
    k("""buffer_load_dwordx4 v[16:19], v3, s[28:31], s25 offen
    buffer_load_dwordx4 v[20:23], v3, s[28:31], s25 offen offset:16
    buffer_load_dwordx4 v[24:27], v3, s[28:31], s26 offen
    buffer_load_dwordx4 v[28:31], v3, s[28:31], s26 offen offset:16
    buffer_store_dword v7, v6, s[28:31], s56 offen sc1""")
    srd(k, 52, 20, 21, 8192, WS_WB)
    k("s_cmp_eq_u32 s22, 0\ns_cselect_b32 s54, 8192, 0")
    k("""buffer_load_dwordx4 v[32:35], v4, s[52:55], 0 offen
    buffer_load_dwordx4 v[36:39], v4, s[52:55], 0 offen offset:16""")
    srd(k, 32, 4, 5, 2*MB)
    for t in range(2):
        for r in range(4):
            k(f"buffer_load_dword v{208+4*t+r}, v5, s[32:35], s27 offen offset:{512*t+32*r}")
    srd(k, 36, 20, 21, W_BYTES, WS_W1P)
    srd(k, 40, 6, 7, 2752)
    srd(k, 44, 8, 9, 1024)
    srd(k, 48, 10, 11, 2*MB)
    k(f"""s_lshr_b32 s61, s3, 1
    s_and_b32 s62, s3, 1
    s_mul_i32 s63, s61, 3
    s_lshl_b32 s64, s62, 1
    s_add_u32 s64, s64, s63
    s_mul_i32 s65, s24, 6
    s_add_u32 s64, s64, s65
    s_lshl_b32 s58, s64, 15
    s_add_u32 s59, s58, 16384
    s_add_u32 s65, s65, s63
    s_add_u32 s65, s65, 1
    s_lshl_b32 s60, s65, 1
    s_add_u32 s60, s60, s62
    s_lshl_b32 s60, s60, 14""")
    with k.capture() as w1loads:
        for kap in range(16):
            for tau in range(3):
                k(f"buffer_load_dwordx4 {R((tau*16+kap)*4, f='a')}, v{12+(kap>>2)}, s[36:39], s{58+tau} offen offset:{(kap&3)*1024}")
    n1 = opt.get("w1_first", 20)
    with k.capture() as cB:
        k(f"""v_cvt_f32_u32 v156, v8
        v_lshlrev_b32 v157, 2, v9
        v_cvt_f32_u32 v157, v157
        s_lshl_b32 s12, s3, 1
        v_cvt_f32_u32 v158, s12""")
        def mats(base, inv, lane_is_k, N1, N):
            for e in range(2):
                if lane_is_k:
                    k(f"v_mul_f32 v159, {f2h(1/N)}, v156\nv_add_f32 v160, {f2h(float(e))}, v158\nv_fmac_f32 v160, {f2h(float(N1))}, v157")
                else:
                    k(f"v_add_f32 v159, {f2h(float(e))}, v158\nv_fmac_f32 v159, {f2h(float(N1))}, v156\nv_mul_f32 v159, {f2h(1/N)}, v159\nv_mov_b32 v160, v157")
                for r in range(4):
                    if r: k(f"v_add_f32 v160, {f2h(float(N1) if lane_is_k else 1.0)}, v160")
                    a, b = 161 + 2*(r & 1), 162 + 2*(r & 1)
                    k(f"v_mul_f32 v{a}, v159, v160\nv_sin_f32 v{b}, v{a}\nv_cos_f32 v{a}, v{a}")
                    if r:
                        pa, pb = 161 + 2*((r-1) & 1), 162 + 2*((r-1) & 1)
                        pack(base + 8*e + r - 1, pa, pb, inv)
                pack(base + 8*e + 3, 163, 164, inv)
        def pack(d, co, si, inv):
            if inv: k(f"v_cvt_pk_bf16_f32 v{d}, v{co}, -v{si}\nv_cvt_pk_bf16_f32 v{d+4}, v{si}, v{co}")
            else: k(f"v_cvt_pk_bf16_f32 v{d}, v{co}, v{si}\nv_cvt_pk_bf16_f32 v{d+4}, -v{si}, v{co}")
        mats(56, False, True, 128, 2048)
        k(f"v_mul_f32 v159, {f2h(1/256)}, v156\nv_mov_b32 v160, v157")
        for r in range(4):
            if r: k("v_add_f32 v160, 1.0, v160")
            k(f"v_mul_f32 v161, v159, v160\nv_cos_f32 v{120+r}, v161\nv_sin_f32 v{124+r}, v161")
        mats(72, False, True, 8, 128)
        k(f"""v_lshrrev_b32 v159, 1, v8
        v_cvt_f32_u32 v159, v159
        v_mul_f32 v159, {f2h(1/8)}, v159
        v_and_b32 v160, 1, v8
        v_cvt_f32_u32 v160, v160
        v_mul_f32 v160, {f2h(0.25)}, v160
        v_mul_f32 v165, 0.5, v157""")
        for e in range(2):
            if e: k("v_add_f32 v165, 1.0, v165")
            k(f"""v_fma_f32 v161, v159, v165, v160
            v_fma_f32 v163, -v159, v165, v160
            v_sin_f32 v162, v161
            v_cos_f32 v161, v161
            v_sin_f32 v164, v163
            v_cos_f32 v163, v163
            v_cvt_pk_bf16_f32 v{128+e}, v161, v162
            v_mul_f32 v163, {f2h(2.0**-19)}, v163
            v_mul_f32 v164, {f2h(2.0**-19)}, v164
            v_cvt_pk_bf16_f32 v{130+e}, v163, v164""")
        mats(88, True, False, 8, 128)
        mats(104, True, False, 128, 2048)
        k(f"""v_lshlrev_b32 v166, 10, v9
        v_lshl_add_u32 v166, v8, 4, v166
        s_lshl_b32 s12, s3, 8
        v_add_u32 v166, s12, v166
        s_lshl_b32 s12, s3, 10
        v_add_u32 v167, s12, v12
        v_lshrrev_b32 v168, 3, v2
        v_lshlrev_b32 v168, 8, v168
        v_lshl_add_u32 v168, v10, 4, v168
        s_lshl_b32 s13, s22, 13
        s_add_u32 s13, s13, {WS_ZP}""")
        for n in range(8):
            k(f"v_lshlrev_b32 v{40+2*n}, 16, v{24+n}\nv_and_b32 v{41+2*n}, 0xffff0000, v{24+n}")
    k.extend(interleave(cB, w1loads[:n1], every=opt.get("w1_every", 10)))
    stamp()
    def twiddle(sign):
        for e in range(2):
            re, im = 132 + 8*e, 136 + 8*e
            for q in range(2):
                a, b = 156 + 4*e + 2*q, 148 + 4*e + 2*q
                n1_, n2_ = ("neg_lo:[0,1,0] neg_hi:[0,1,0]", "") if sign > 0 else ("", "neg_lo:[0,1,0] neg_hi:[0,1,0]")
                k(f"""v_pk_mul_f32 {R(a,2)}, {R(re+2*q,2)}, {R(120+2*q,2)}
                v_pk_mul_f32 {R(b,2)}, {R(im+2*q,2)}, {R(120+2*q,2)}
                v_pk_fma_f32 {R(a,2)}, {R(im+2*q,2)}, {R(124+2*q,2)}, {R(a,2)} {n1_}
                v_pk_fma_f32 {R(b,2)}, {R(re+2*q,2)}, {R(124+2*q,2)}, {R(b,2)} {n2_}""")
            for r in range(4):
                k(f"v_cvt_pk_bf16_f32 v{16+4*e+r}, v{156+4*e+r}, v{148+4*e+r}")
    def stage(cbase, data_is_A):
        for e in range(2):
            for part in range(2):
                c_ = R(cbase + 8*e + 4*part); d_ = R(16 + 4*e)
                k(f"{MF} {R(132+8*e+4*part)}, {d_ if data_is_A else c_}, {c_ if data_is_A else d_}, 0")
    stage(56, True)
    twiddle(-1)
    stage(72, False)
    for e in range(2):
        for r in range(4): k(f"v_cvt_pk_bf16_f32 v{16+2*r+e}, v{132+8*e+r}, v{136+8*e+r}")
    k(f"ds_write_b128 v166, v[16:19] offset:{LB1}\nds_write_b128 v166, v[20:23] offset:{LB1+4096}")
    k.wait_lds(); k("s_barrier")
    k(f"ds_read_b128 v[16:19], v167 offset:{LB1}\nds_read_b128 v[20:23], v167 offset:{LB1+4096}")
    for r in range(4): k(f"{MF16} {R(132+4*r)}, v[128:129], {R(16+2*r,2)}, 0")
    for n in range(8):
        F = R(132+2*n, 2); W = R(40+2*n, 2); T = R(148+2*n, 2)
        k(f"v_pk_mul_f32 {T}, {F}, {W} op_sel:[0,0] op_sel_hi:[1,0]")
    for n in range(8):
        F = R(132+2*n, 2); W = R(40+2*n, 2); T = R(148+2*n, 2)
        k(f"v_pk_fma_f32 {T}, {F}, {W}, {T} op_sel:[1,1,0] op_sel_hi:[0,1,1] neg_lo:[0,1,0]")
    k("s_cmp_lg_u32 s22, 0")
    with k.skippable("s_cbranch_scc1"):
        k(f"""s_lshl_b32 s12, s3, 6
        v_lshl_add_u32 v169, v9, 9, v8
        v_add_u32 v169, s12, v169
        v_lshlrev_b32 v170, 3, v169""")
        for n in range(8):
            k(f"ds_write_b64 v170, {R(132+2*n,2)} offset:{LSP + 8*(16*(n>>1) + 256*(n&1))}")
        k.wait_lds(); k("s_barrier")
        for n in range(8):
            k(f"""v_sub_u32 v170, {2048 - (16*(n>>1) + 256*(n&1))}, v169
            v_and_b32 v170, 2047, v170
            v_lshlrev_b32 v170, 3, v170
            ds_read_b64 {R(132+2*n,2)}, v170 offset:{LSP}
            v_lshlrev_b32 v{40+2*n}, 16, v{32+n}
            v_and_b32 v{41+2*n}, 0xffff0000, v{32+n}""")
        for n in range(8):
            F = R(132+2*n, 2); W = R(40+2*n, 2); T = R(148+2*n, 2)
            k(f"""v_pk_fma_f32 {T}, {F}, {W}, {T} op_sel:[0,0,0] op_sel_hi:[1,0,1] neg_hi:[1,0,0]
            v_pk_fma_f32 {T}, {F}, {W}, {T} op_sel:[1,1,0] op_sel_hi:[0,1,1]""")
    for n in range(8): k(f"v_cvt_pk_bf16_f32 v{16+n}, v{148+2*n}, v{149+2*n}")
    for r in range(4): k(f"{MF16} {R(132+4*r)}, v[130:131], {R(16+2*r,2)}, 0")
    for r in range(4):
        for e in range(2): k(f"v_cvt_pk_bf16_f32 v{24+4*e+r}, v{132+4*r+2*e}, v{133+4*r+2*e}")
    k(f"ds_write_b128 v166, v[24:27] offset:{LB2}\nds_write_b128 v166, v[28:31] offset:{LB2+4096}")
    k.wait_lds(); k("s_barrier")
    k(f"ds_read_b128 v[16:19], v167 offset:{LB2}\nds_read_b128 v[20:23], v167 offset:{LB2+4096}")
    stage(88, True)
    twiddle(+1)
    stage(104, False)
    for e in range(2):
        for r in range(4): k(f"v_cvt_pk_bf16_f32 v{24+4*e+r}, v{132+8*e+r}, v{136+8*e+r}")
        k(f"buffer_store_dwordx4 {R(24+4*e)}, v168, s[28:31], s13 offen offset:{128*e} sc1")
    stamp()
    with k.capture() as cC:
        k(f"""v_cvt_f32_u32 v248, v8
        v_lshlrev_b32 v249, 2, v9
        v_cvt_f32_u32 v249, v249
        v_mul_f32 v250, {f2h(1/16)}, v248
        v_cmp_lt_u32 vcc, 1, v9
        v_mov_b32 v251, 0x80000000
        v_cndmask_b32 v251, 0, v251, vcc""")
        for r in range(4):
            k(f"""v_add_f32 v252, {f2h(float(r))}, v249
            v_mul_f32 v252, v252, v250
            v_sin_f32 v253, v252
            v_cos_f32 v252, v252
            v_cvt_pk_bf16_f32 v{144+r}, v252, -v253
            v_cvt_pk_bf16_f32 v{148+r}, v253, v252
            v_xor_b32 v{144+r}, v251, v{144+r}
            v_xor_b32 v{148+r}, v251, v{148+r}""")
        k(f"""s_lshl_b32 s12, s3, 2
        v_cvt_f32_u32 v250, s12
        v_fmac_f32 v250, {f2h(16.0)}, v248
        v_mul_f32 v250, {f2h(1/512)}, v250
        v_mul_f32 v254, 0.5, v248
        v_mov_b32 v255, {f2h(0.25)}
        v_cmp_eq_u32 vcc, 0, v9
        v_cndmask_b32 v254, v255, v254, vcc""")
        for n in range(4):
            for t in range(2):
                d = 160 + 8*n + 4*t
                k(f"v_add_f32 v251, {f2h((256*t + n)/512)}, v250")
                k(f"""v_mul_f32 v240, v249, v251
                v_add_f32 v241, v240, v254
                v_add_f32 v242, v240, v251
                v_cos_f32 v240, v240
                v_cos_f32 v241, v241
                v_add_f32 v244, v242, v251
                v_sin_f32 v243, v242
                v_cos_f32 v242, v242
                v_add_f32 v246, v244, v251
                v_sin_f32 v245, v244
                v_cos_f32 v244, v244
                v_cvt_pk_bf16_f32 v{d}, v240, v241
                v_sin_f32 v247, v246
                v_cos_f32 v246, v246
                v_cvt_pk_bf16_f32 v{d+1}, v242, -v243
                v_cvt_pk_bf16_f32 v{d+2}, v244, -v245
                v_cvt_pk_bf16_f32 v{d+3}, v246, -v247""")
        for r in range(128, 144): k(f"v_mov_b32 v{r}, 0")
        for t in range(2):
            for r in range(4):
                k(f"v_lshlrev_b32 v{192+4*t+r}, 16, v{208+4*t+r}\nv_and_b32 v{200+4*t+r}, 0xffff0000, v{208+4*t+r}")
        k(f"""v_lshlrev_b32 v3, 18, v11
        v_lshl_add_u32 v3, v9, 15, v3
        v_lshrrev_b32 v4, 2, v10
        v_lshl_add_u32 v3, v4, 7, v3
        v_and_b32 v4, 3, v10
        v_lshl_add_u32 v3, v4, 2, v3
        s_lshl_b32 s12, s3, 19
        s_lshl_b32 s13, s23, 8
        s_add_u32 s12, s12, s13
        s_lshl_b32 s13, s24, 4
        s_add_u32 s12, s12, s13
        s_add_u32 s12, s12, {WS_ZP}
        s_add_u32 s13, s12, {8192}
        s_add_u32 s14, s12, {2*8192}
        s_add_u32 s15, s12, {3*8192}
        s_add_u32 s16, s12, {16*8192}
        s_add_u32 s17, s12, {17*8192}
        s_add_u32 s18, s12, {18*8192}
        s_add_u32 s19, s12, {19*8192}
        v_lshlrev_b32 v5, 4, v10
        v_lshl_add_u32 v4, v9, 11, v5
        v_lshl_add_u32 v4, v11, 3, v4
        s_lshl_b32 s66, s3, 7
        s_add_u32 s66, s66, {LC}
        v_add_u32 v4, s66, v4
        v_lshl_add_u32 v6, v9, 8, v5
        v_lshl_add_u32 v6, v11, 11, v6
        v_lshl_add_u32 v5, v9, 7, v5
        s_lshl_b32 s66, s3, 11
        s_add_u32 s66, s66, {LC}
        v_add_u32 v5, s66, v5
        v_lshlrev_b32 v1, 5, v10
        v_add_u32 v1, {LST}, v1
        v_lshrrev_b32 v7, 5, v0
        v_lshl_add_u32 v7, v7, 4, v1
        s_lshl_b32 s66, s3, 2
        v_add_u32 v7, s66, v7
        s_lshl_b32 s66, s23, 16
        s_lshr_b32 s67, s24, 1
        s_lshl_b32 s67, s67, 14
        s_add_u32 s67, s67, s66
        s_lshl_b32 s68, s3, 12
        s_add_u32 s67, s67, s68
        s_and_b32 s68, s24, 1
        s_lshl_b32 s68, s68, 7
        s_add_u32 s67, s67, s68
        s_add_u32 s68, s67, {WS_HH}
        s_add_u32 s67, s67, {WS_LN2}
        v_lshlrev_b32 v2, 2, v10
        v_mov_b32 v255, 0x3f803f80
        s_mov_b32 s4, 0x00ff00ff
        s_mov_b32 s5, 0x00ff00ff
        s_not_b64 s[6:7], s[4:5]""")
    idload = "buffer_load_dword v254, v2, s[28:31], s57 offen sc1"
    with k.capture() as rest:
        k.extend(w1loads[n1:])
    k.extend(interleave(cC, rest, every=opt.get("w1_every2", 8)))
    k("s_cmp_lg_u32 s3, 0")
    with k.skippable("s_cbranch_scc1"):
        k(f"""v_cmp_lt_u32 vcc, 1, v9
        v_mov_b32 v240, {f2h(-240.0)}
        v_cndmask_b32 v240, 0, v240, vcc
        v_fmac_f32 v240, {f2h(32.0)}, v249
        v_mul_f32 v241, {f2h(1/512)}, v248""")
        for r in range(4):
            k(f"""v_add_f32 v242, {f2h(32.0*r)}, v240
            v_mul_f32 v242, v242, v241
            v_sin_f32 v243, v242
            v_cos_f32 v242, v242
            v_cvt_pk_bf16_f32 v244, v242, -v243
            v_cndmask_b32 v{152+r}, v244, 0, vcc
            v_cndmask_b32 v{156+r}, 0, v244, vcc""")
        k(f"""v_and_b32 v242, 1, v8
        v_lshlrev_b32 v242, 31, v242
        v_or_b32 v242, 0x3f003f00, v242
        v_cmp_eq_u32 vcc, 0, v9
        v_cndmask_b32 v152, v152, v242, vcc""")
    k(idload)
    zl = "\n".join(f"buffer_load_dword v{216+n}, v3, s[28:31], s{12+n} offen sc1" for n in range(8))
    stamp()
    k(zl)
    poll(idload, "v_cmp_eq_u32 vcc, 0, v254", "pid")
    k("""v_cmp_ne_u32 vcc, s71, v254
    s_cmp_eq_u64 vcc, 0
    s_cselect_b32 s70, 1, 0""")
    if opt.get("force_slow"): k("s_mov_b32 s70, 0")
    poll(zl, """v_max3_u32 v240, v216, v217, v218
    v_max3_u32 v241, v219, v220, v221
    v_max3_u32 v240, v240, v222, v223
    v_max_u32 v240, v240, v241
    v_cmp_eq_u32 vcc, -1, v240""", "pz")
    stamp()
    k(f"{MF} {R(232)}, {R(144)}, {R(220)}, 0\n{MF} {R(236)}, {R(148)}, {R(220)}, 0")
    l_sp = k.newlabel("sp"); l_j = k.newlabel("j")
    k(f"{MF} {R(224)}, {R(144)}, {R(216)}, 0\n{MF} {R(228)}, {R(148)}, {R(216)}, 0")
    k("s_cmp_lg_u32 s3, 0")
    with k.skippable("s_cbranch_scc1"):
        k(f"{MF} {R(240)}, {R(152)}, {R(216)}, 0\n{MF} {R(244)}, {R(156)}, {R(216)}, 0")
        for r in range(8): k(f"v_cndmask_b32 v{224+r}, v{224+r}, v{240+r}, s[4:5]")
    for r in range(4):
        for p in range(2): k(f"v_cvt_pk_bf16_f32 v{240+2*r+p}, v{224+8*p+r}, v{228+8*p+r}")
        k(f"ds_write_b64 v4, {R(240+2*r,2)} offset:{512*r}")
    k.wait_lds(); k("s_barrier")
    k(f"""s_mov_b64 exec, s[4:5]
    ds_read_b128 {R(128)}, v5
    ds_read_b128 {R(132)}, v5 offset:512
    s_mov_b64 exec, s[6:7]
    ds_read_b128 {R(136)}, v5 offset:1024
    ds_read_b128 {R(140)}, v5 offset:1536
    s_mov_b64 exec, -1""")
    for hv in range(2):
        for e in range(2):
            for t in range(2):
                n = 2*hv + e
                k(f"{MF} {R(192+8*e+4*t)}, {R(160+8*n+4*t)}, {R(128+4*n)}, {R(192+8*e+4*t)}")
    k("v_mov_b32 v248, 0\nv_mov_b32 v249, 0\nv_mov_b32 v250, 0\nv_mov_b32 v251, 0")
    for t in range(2):
        for r in range(4): k(f"v_cvt_pk_bf16_f32 v{240+4*t+r}, v{192+4*t+r}, v{200+4*t+r}")
    for n in range(4):
        k(f"""v_dot2c_f32_bf16 v248, v{240+n}, v255
        v_dot2c_f32_bf16 v249, v{240+n}, v{240+n}
        v_dot2c_f32_bf16 v250, v{244+n}, v255
        v_dot2c_f32_bf16 v251, v{244+n}, v{244+n}""")
    k.dual("s70", [f"buffer_store_dwordx4 {R(240+4*t)}, v6, s[28:31], s68 offen offset:{1024*t}" for t in range(2)], "sc1", tag="x3")
    k("""v_add_f32 v248, v248, v250
    v_add_f32 v249, v249, v251
    v_permlane32_swap_b32 v248, v249
    v_add_f32 v248, v248, v249
    v_mov_b32 v249, v248
    v_permlane16_swap_b32 v248, v249
    v_add_f32 v248, v248, v249
    v_add_f32_dpp v248, v248, v248 row_ror:8 row_mask:0xf bank_mask:0xf
    ds_write_b32 v7, v248""")
    k.wait_lds(); k("s_barrier")
    k(f"""ds_read_b128 {R(224)}, v1
    ds_read_b128 {R(228)}, v1 offset:16
    v_add_f32 v224, v224, v225
    v_add_f32 v226, v226, v227
    v_add_f32 v228, v228, v229
    v_add_f32 v230, v230, v231
    v_add_f32 v224, v224, v226
    v_add_f32 v228, v228, v230
    v_mul_f32 v224, {f2h(1/512)}, v224
    v_mul_f32 v228, {f2h(1/512)}, v228
    v_fma_f32 v228, -v224, v224, v228
    v_max_f32 v228, 0, v228
    v_add_f32 v228, {f2h(1e-5)}, v228
    v_rsq_f32 v228, v228
    v_mul_f32 v229, -v224, v228""")
    for n in range(8):
        k(f"v_pk_fma_f32 {R(192+2*n,2)}, {R(192+2*n,2)}, v[228:229], v[228:229] op_sel:[0,0,1] op_sel_hi:[1,0,1]")
    for t in range(2):
        for r in range(4): k(f"v_cvt_pk_bf16_f32 v{216+4*t+r}, v{192+4*t+r}, v{200+4*t+r}")
    k.dual("s70", [f"buffer_store_dwordx4 {R(216+4*t)}, v6, s[28:31], s67 offen offset:{1024*t}" for t in range(2)], "sc1", tag="x3")
    stamp()
    k(f"""v_cmp_eq_u32 vcc, 0, v0
    v_mov_b32 v3, {OOB}
    v_cndmask_b32 v3, v3, 0, vcc
    v_mov_b32 v4, 1
    s_lshl_b32 s12, s24, 4
    s_lshl_b32 s13, s3, 2
    s_add_u32 s12, s12, s13
    s_add_u32 s12, s12, s57
    v_and_b32 v5, 31, v0
    v_lshlrev_b32 v5, 2, v5
    s_lshl_b32 s13, s3, 12
    s_add_u32 s14, s13, s66
    s_add_u32 s14, s14, {WS_LN2}
    s_add_u32 s15, s13, {LH}""")
    k.wait_tag("x3")
    k.dual("s70", ["buffer_store_dword v4, v3, s[28:31], s12 offen offset:128"], "sc1")
    f3 = "buffer_load_dword v6, v5, s[28:31], s57 offen offset:128 sc1"
    k(f3)
    k(f"""v_lshlrev_b32 v7, 3, v9
    s_lshr_b32 s16, s58, 9
    s_lshr_b32 s17, s60, 9
    buffer_load_dwordx2 v[80:81], v7, s[40:43], s16 offen
    buffer_load_dwordx2 v[82:83], v7, s[40:43], s16 offen offset:32
    buffer_load_dwordx2 v[84:85], v7, s[40:43], s17 offen
    s_lshl_b32 s16, s24, 7
    s_lshl_b32 s17, s3, 5
    s_add_u32 s16, s16, s17
    buffer_load_dwordx2 v[86:87], v7, s[44:47], s16 offen""")
    k(f"""v_and_b32 v2, 3, v10
    v_lshlrev_b32 v2, 7, v2
    v_lshrrev_b32 v1, 2, v10
    v_add_u32 v2, v2, v1
    v_lshl_add_u32 v2, v11, 3, v2
    v_lshlrev_b32 v2, 10, v2
    v_add_u32 v2, v2, v7
    s_bfe_u32 s17, s23, 0x20001
    s_lshl_b32 s17, s17, 9
    s_and_b32 s18, s23, 1
    s_lshl_b32 s18, s18, 6
    s_add_u32 s17, s17, s18
    s_lshr_b32 s18, s23, 3
    s_lshl_b32 s18, s18, 1
    s_add_u32 s17, s17, s18
    s_lshl_b32 s17, s17, 10
    s_add_u32 s17, s17, s16
    v_lshlrev_b32 v1, 12, v9
    v_lshl_add_u32 v1, v8, 4, v1
    s_lshr_b32 s18, s24, 2
    s_lshl_b32 s18, s18, 10
    s_and_b32 s19, s24, 3
    s_lshl_b32 s19, s19, 8
    s_add_u32 s18, s18, s19
    s_lshl_b32 s19, s3, 2
    s_add_u32 s18, s18, s19
    s_add_u32 s18, s18, s66
    s_add_u32 s18, s18, {WS_HH}
    s_mul_i32 s19, s23, {4*49152}
    s_add_u32 s19, s19, {WS_HID}
    s_lshl_b32 s64, s64, 10
    s_add_u32 s64, s64, s19
    s_lshl_b32 s65, s65, 10
    s_add_u32 s65, s65, s19
    s_lshl_b32 s62, s62, 3
    s_add_u32 s65, s65, s62
    s_mul_i32 s61, s3, 11
    s_lshl_b32 s62, s61, 10
    s_add_u32 s19, s19, s62
    s_mul_i32 s62, s24, 43
    s_add_u32 s61, s61, s62
    s_lshl_b32 s61, s61, 12
    s_add_u32 s61, s61, {WS_W2P}
    s_add_u32 s62, s61, {10*4096}
    s_cmp_eq_u32 s3, 3
    s_cselect_b32 s62, {OOB}, s62""")
    for sg in range(4):
        k(f"s_add_u32 s63, s3, {sg}\ns_and_b32 s63, s63, 3\ns_lshl_b32 s63, s63, 10\nv_add_u32 v{8+sg}, s63, v12")
    k(f"v_add_u32 v7, {LH}, v12")
    poll(f3, "v_cmp_eq_u32 vcc, 0, v6", "pf3")
    stamp()
    for rt in range(4):
        k(f"s_mov_b32 m0, s15")
        for m in range(4):
            k(f"buffer_load_dwordx4 v12, s[28:31], s14 offen offset:{1024*m} sc1 lds", tag=f"dma{rt}")
        if rt < 3: k("s_add_u32 s14, s14, 16384\ns_add_u32 s15, s15, 16384")
    for rt in range(4):
        for h in range(2):
            k(f"buffer_load_dword v{136+2*rt+h}, v1, s[28:31], s18 offen offset:{2048*h} sc1")
        if rt < 3: k("s_add_u32 s18, s18, 16384")
    for n in range(6):
        k(f"v_lshlrev_b32 v{16+2*n}, 16, v{80+n}\nv_and_b32 v{17+2*n}, 0xffff0000, v{80+n}")
    for n in range(2):
        k(f"v_lshlrev_b32 v{132+2*n}, 16, v{86+n}\nv_and_b32 v{133+2*n}, 0xffff0000, v{86+n}")
    def w2reg(s, sg): return R(192 + 16*s + 4*sg, f="a") if s < 4 else R(144 + 16*(s-4) + 4*sg)
    def w2loads(steps):
        with k.capture() as L:
            for s in steps:
                for sg in range(4):
                    k(f"buffer_load_dwordx4 {w2reg(s, sg)}, v{8+sg}, s[28:31], s{62 if s == 10 else 61} offen")
                if s < 9: k("s_add_u32 s61, s61, 4096")
        return L
    def hload(rt, s): return f"buffer_load_dwordx4 {R(88+4*s)}, v{12+(s>>2)}, s[28:31], s19 offen offset:{(s&3)*1024} sc1"
    def rd(rt, kap): return f"ds_read_b128 {R(28+4*(kap&3))}, v7 offset:{rt*16384+kap*1024}"
    def epi(rt):
        a = 44 + 12*(rt & 1)
        with k.capture() as L:
            for n in range(12): k(f"v_max_f32 v{68+n}, 0, v{a+n}")
            for n in range(12): k(f"v_mul_f32 v{68+n}, v{68+n}, v{a+n}")
            for n in range(6): k(f"v_cvt_pk_bf16_f32 v{80+n}, v{68+2*n}, v{69+2*n}")
            k.dual("s70", [f"buffer_store_dwordx4 v[80:83], v12, s[28:31], s64 offen", f"buffer_store_dwordx2 v[84:85], v12, s[28:31], s65 offen"], "sc1", tag=f"h{rt}")
            if rt < 3: k("s_add_u32 s64, s64, 49152\ns_add_u32 s65, s65, 49152")
        return L
    def flag4(rt):
        k.wait_tag(f"h{rt}")
        k.dual("s70", [f"buffer_store_dword v4, v3, s[28:31], s12 offen offset:{256+128*rt}"], "sc1")
    def f4(rt): return f"buffer_load_dword v6, v5, s[28:31], s57 offen offset:{256+128*rt} sc1"
    k.wait_tag("dma0"); k("s_barrier")
    for kap in range(3): k(rd(0, kap))
    stamp()
    w2sched = [[0, 1, 2], [3, 4, 5], [6, 7, 8], [9, 10]]
    for rt in range(4):
        a = 44 + 12*(rt & 1)
        with k.capture() as main:
            for kap in range(16):
                if kap == 12 and rt < 3:
                    k.wait_tag(f"dma{rt+1}"); k("s_barrier")
                if rt == 3 and kap == 4: k(f4(0))
                if rt == 3 and kap == 8:
                    poll(f4(0), "v_cmp_eq_u32 vcc, 0, v6", "pf40")
                    k(f4(1))
                for tau in range(3):
                    c_ = R(16+4*tau) if kap == 0 else R(a+4*tau)
                    k(f"{MF} {R(a+4*tau)}, {R((tau*16+kap)*4, f='a')}, {R(28+4*(kap&3))}, {c_}")
                    if rt == 3 and kap >= 8 and (kap-8)*3+tau < 22 and ((kap-8)*3+tau) % 2 == 0: k(hload(0, ((kap-8)*3+tau)//2))
                if kap + 3 < 16: k(rd(rt, kap+3))
                elif rt < 3: k(rd(rt+1, kap+3-16))
        fill = (epi(rt-1) if rt else []) + w2loads(w2sched[rt])
        k.extend(interleave(main, fill, every=1, per=2 if rt else 1, start=3, only="mfma"))
        if rt: flag4(rt-1)
    poll(f4(1), "v_cmp_eq_u32 vcc, 0, v6", "pf41")
    stamp()
    def red_a(rt):
        a = 16 + 16*(rt & 1)
        for sg in range(1, 4): k(f"ds_write_b128 v{8+sg}, {R(a+4*sg)} offset:{LRD + 12288*(rt&1) + 4096*(sg-1)}")
    def red_b(rt):
        a = 16 + 16*(rt & 1)
        k.wait_lds(); k("s_barrier")
        for sg in range(1, 4): k(f"ds_read_b128 {R(48+4*(sg-1))}, v8 offset:{LRD + 12288*(rt&1) + 4096*(sg-1)}")
        for h in range(2): k(f"v_lshlrev_b32 v{68+2*h}, 16, v{136+2*rt+h}\nv_and_b32 v{69+2*h}, 0xffff0000, v{136+2*rt+h}")
        for r in range(4): k(f"v_add_f32 v{68+r}, v{68+r}, v{132+r}")
        for r in range(4): k(f"v_add_f32 v{68+r}, v{68+r}, v{a+r}")
        for sg in range(3):
            for r in range(4): k(f"v_add_f32 v{68+r}, v{68+r}, v{48+4*sg+r}")
        k("v_cvt_pk_bf16_f32 v72, v68, v69\nv_cvt_pk_bf16_f32 v73, v70, v71")
        k("buffer_store_dwordx2 v[72:73], v2, s[48:51], s17 offen")
        if rt < 3: k("s_add_u32 s17, s17, 16384")
    for rt in range(4):
        a = 16 + 16*(rt & 1)
        with k.capture() as main:
            if rt < 3: k("s_add_u32 s19, s19, 49152")
            for s in range(11):
                if s == 7 and rt < 2: k(f4(rt+2))
                for sg in range(4):
                    k(f"{MF} {R(a+4*sg)}, {w2reg(s, sg)}, {R(88+4*s)}, {'0' if s == 0 else R(a+4*sg)}")
                if rt < 3: k(hload(rt+1, s))
        with k.capture() as fill:
            if rt == 0: k.extend(epi(3))
            else: red_a(rt-1); red_b(rt-1)
        k.extend(interleave(main, fill, every=1, per=2, start=3, only="mfma"))
        if rt == 0: flag4(3)
        if rt < 2: poll(f4(rt+2), "v_cmp_eq_u32 vcc, 0, v6", f"pf4{rt+2}")
    stamp()
    red_a(3); red_b(3)
    if diag:
        k.wait_vm_all(); stamp()
        k(f"""s_waitcnt lgkmcnt(0)
        s_lshl_b32 s12, s2, 9
        s_lshl_b32 s13, s3, 7
        s_add_u32 s12, s12, s13
        s_add_u32 s12, s12, {WS_DBG}""")
        for n in range(nst[0]):
            k(f"v_mov_b32 v4, s{72+2*n}\nbuffer_store_dword v4, v3, s[28:31], s12 offen offset:{4*n}")
    k.label("k2_end")
    k("s_endpgm")
    for name, loads, check in slow:
        k.mark("reset")
        k.label(f"{name}_retry")
        k("s_mov_b32 s69, 0")
        k.label(f"{name}_loop")
        k(f"s_add_u32 s69, s69, 1\ns_cmp_gt_u32 s69, 4000\ns_cbranch_scc1 {name}_out")
        k(loads); k("s_waitcnt vmcnt(0)"); k(check)
        k(f"s_cbranch_vccnz {name}_loop")
        k.label(f"{name}_out")
        k(f"s_waitcnt vmcnt(0)\ns_nop 7\ns_branch {name}_ok")
    return k

def build_all(diag=False, opt=None):
    k2 = gen_k2(diag, opt); t2 = k2.text()
    nbytes = sum(0 if i.raw else 8 for i in k2.ins)
    k1 = gen_k1("k2_kernel", nbytes & ~127); t1 = k1.text()
    return "\n".join(["; @launch kernel=k1_kernel grid=(256,1,1) block=(512,1,1) lds=36864",
        f"; @launch kernel=k2_kernel grid=(256,1,1) block=(256,1,1) lds={K2_LDS}",
        '.amdgcn_target "amdgcn-amd-amdhsa--gfx950"', t1, t2, ".fill 4096, 4, 0xbf800000", '.section .rodata,"a"',
        kd("k1_kernel", 112, 112), kd("k2_kernel", 512, 256, 102)]) + "\n"

if __name__ == "__main__":
    import sys, json
    diag = "diag" in sys.argv
    opt = json.loads(sys.argv[-1]) if sys.argv[-1].startswith("{") else {}
    sys.stdout.write(build_all(diag, opt))
```

```python
import sys
from asmgen import *
MB = 1 << 20; KB = 1024
WS_Z, WS_WT, WS_ZP = 0, 2*MB, 4*MB
WS_W1P, WS_W2P = 6*MB, 8*MB
WS_LN2, WS_HH = 10*MB, 12*MB
WS_HID = 14*MB
WS_WB = 20*MB
WS_FL = 21*MB
WS_DBG = 24*MB
W_BYTES = 1376*KB

def srd(k, R, lo, hi, size, add=0):
    if add:
        k(f"s_add_u32 s{R}, s{lo}, {add}\ns_addc_u32 s{R+1}, s{hi}, 0")
    else:
        k(f"s_mov_b32 s{R}, s{lo}\ns_mov_b32 s{R+1}, s{hi}")
    k(f"s_mov_b32 s{R+2}, {size}\ns_mov_b32 s{R+3}, 0x20000")

def item_id(k, dst, t0):
    k(f"""s_and_b32 s{dst}, s2, 7
    s_lshl_b32 s{dst}, s{dst}, 2
    s_lshr_b32 s{t0}, s2, 6
    s_add_u32 s{dst}, s{dst}, s{t0}
    s_lshl_b32 s{dst}, s{dst}, 3
    s_bfe_u32 s{t0}, s2, 0x30003
    s_add_u32 s{dst}, s{dst}, s{t0}""")

def gen_k1(k2_label="k2_kernel", k2_bytes=0, diag=False):
    k = Kernel("k1_kernel")
    k(f"s_cmp_ge_u32 s2, 256\ns_cbranch_scc1 k1_end")
    if diag: k("s_memrealtime s[70:71]"); k.ins[-1].kind = "salu"
    k("""s_load_dwordx4 s[4:7], s[0:1], 0
    s_load_dwordx2 s[8:9], s[0:1], 16
    s_load_dwordx2 s[12:13], s[0:1], 32
    s_load_dwordx2 s[16:17], s[0:1], 48
    s_load_dwordx2 s[20:21], s[0:1], 80
    v_lshrrev_b32 v1, 6, v0
    v_and_b32 v0, 63, v0
    v_readfirstlane_b32 s3, v1""")
    item_id(k, 22, 23)
    k("s_cmp_ge_u32 s3, 4\ns_cbranch_scc1 k1_extras")
    LX, LT, LR = 0, 8192, 8192 + 16*528
    k("""s_bfe_u32 s24, s22, 0x20004
    s_lshl_b32 s24, s24, 9
    s_and_b32 s25, s22, 15
    s_lshl_b32 s25, s25, 3
    s_add_u32 s24, s24, s25
    s_lshr_b32 s25, s22, 6
    s_lshl_b32 s25, s25, 1
    s_add_u32 s24, s24, s25
    s_lshr_b32 s25, s3, 1
    s_add_u32 s24, s24, s25
    s_and_b32 s25, s3, 1
    s_lshl_b32 s25, s25, 8
    s_add_u32 s24, s24, s25
    s_lshl_b32 s24, s24, 10
    s_add_u32 s25, s24, 131072
    s_lshl_b32 s26, s3, 11
    v_lshlrev_b32 v2, 4, v0
    s_waitcnt lgkmcnt(0)""")
    srd(k, 28, 4, 5, 2*MB)
    k("s_mov_b32 m0, s26")
    k("buffer_load_dwordx4 v2, s[28:31], s24 offen lds", tag="x")
    k("s_add_u32 m0, s26, 1024")
    k("buffer_load_dwordx4 v2, s[28:31], s25 offen lds", tag="x")
    srd(k, 32, 20, 21, 2*MB, WS_Z)
    k("""v_and_b32 v3, 15, v0
    v_lshrrev_b32 v4, 4, v0
    v_cvt_f32_u32 v5, v3
    v_lshlrev_b32 v7, 2, v4
    v_cvt_f32_u32 v6, v7""")
    k(f"""v_mul_f32 v8, {f2h(1/32)}, v5
    v_cmp_eq_u32 vcc, 0, v3
    v_mov_b32 v9, 0.5
    v_cndmask_b32 v9, v8, v9, vcc
    v_mov_b32 v10, {f2h(0.25)}
    v_cndmask_b32 v10, v10, 0, vcc
    v_mov_b32 v11, {f2h(1/16)}
    v_cndmask_b32 v11, 0, v11, vcc""")
    for jp in range(4):
        for q in range(2):
            j = 2*jp + q
            off = float((j & 3) + 16*(j >> 2))
            k(f"""v_add_f32 v12, {f2h(off)}, v6
            v_mul_f32 v{24+q}, v12, v8
            v_fma_f32 v{26+q}, v12, v9, v10
            v_cos_f32 v{24+q}, v{24+q}
            v_cos_f32 v{26+q}, v{26+q}""")
        k(f"v_cvt_pk_bf16_f32 v{16+jp}, v24, v25\nv_cvt_pk_bf16_f32 v{20+jp}, v26, v27")
    k(f"""s_lshl_b32 s27, s3, 2
    v_cvt_f32_u32 v13, s27
    v_fmac_f32 v13, {f2h(32.0)}, v5
    v_mul_f32 v13, {f2h(1/512)}, v13
    v_cmp_lt_u32 vcc, 7, v3
    v_mov_b32 v14, 0x80008000
    v_cndmask_b32 v14, 0, v14, vcc""")
    for n in range(4):
        k(f"v_add_f32 v15, {f2h(n/512)}, v13")
        for r in range(4):
            k(f"""v_add_f32 v12, {f2h(float(r))}, v6
            v_mul_f32 v24, v12, v15
            v_cos_f32 v25, v24
            v_sin_f32 v26, v24
            v_cvt_pk_bf16_f32 v{32+8*n+r}, v25, v26
            v_cvt_pk_bf16_f32 v{36+8*n+r}, -v26, v25
            v_xor_b32 v{36+8*n+r}, v14, v{36+8*n+r}""")
    k("s_cmp_lg_u32 s3, 0")
    with k.skippable("s_cbranch_scc1"):
        k(f"""v_cmp_lt_u32 vcc, 7, v3
        v_mul_f32 v15, {f2h(32/512)}, v5
        v_mov_b32 v24, {f2h(240/512)}
        v_cndmask_b32 v24, 0, v24, vcc
        v_sub_f32 v15, v15, v24
        v_mov_b32 v27, 0xffff
        v_mov_b32 v28, 0xffff0000
        v_cndmask_b32 v27, v27, v28, vcc
        v_cmp_eq_u32 vcc, 0, v3""")
        for r in range(4):
            k(f"""v_add_f32 v12, {f2h(float(r))}, v6
            v_mul_f32 v24, v12, v15
            v_cos_f32 v25, v24
            v_sin_f32 v26, v24
            v_mov_b32 v28, {'1.0' if r & 1 else '-1.0'}
            v_cndmask_b32 v26, v26, v28, vcc
            v_cvt_pk_bf16_f32 v{32+r}, v25, v25
            v_cvt_pk_bf16_f32 v{36+r}, -v26, -v26
            v_and_b32 v{32+r}, v27, v{32+r}
            v_and_b32 v{36+r}, v27, v{36+r}""")
    for r in range(64, 80): k(f"v_mov_b32 v{r}, 0")
    k(f"""v_lshlrev_b32 v80, 3, v0
    v_add_u32 v80, s26, v80
    v_mul_u32_u24 v81, 528, v3
    v_lshl_add_u32 v81, v4, 7, v81
    s_lshl_b32 s36, s3, 5
    s_add_u32 s36, s36, {LT}
    v_add_u32 v81, s36, v81
    v_and_b32 v82, 7, v0
    v_lshlrev_b32 v82, 4, v82
    v_lshl_add_u32 v82, v4, 7, v82
    s_mul_i32 s36, s3, {4*528}
    s_add_u32 s36, s36, {LT}
    v_add_u32 v82, s36, v82
    v_and_b32 v83, 1, v4
    v_lshlrev_b32 v84, 2, v83
    s_lshl_b32 s36, s3, 3
    s_add_u32 s36, s36, {LR}
    v_add_u32 v84, s36, v84
    v_lshlrev_b32 v83, 4, v83
    v_lshrrev_b32 v85, 1, v4
    v_lshlrev_b32 v85, 17, v85
    v_lshrrev_b32 v86, 2, v3
    v_lshl_add_u32 v85, v86, 15, v85
    v_and_b32 v86, 3, v3
    v_lshl_add_u32 v85, v86, 5, v85
    v_add_u32 v85, v85, v83
    v_add_u32 v83, {LR}, v83
    s_lshl_b32 s37, s3, 19
    s_lshl_b32 s36, s22, 7
    s_add_u32 s37, s37, s36
    s_add_u32 s38, s37, {2*131072}
    v_mov_b32 v87, 0x3f803f80
    s_mov_b32 s40, 0x00ff00ff
    s_mov_b32 s41, 0x00ff00ff
    s_not_b64 s[42:43], s[40:41]""")
    k.wait_tag("x")
    k("""ds_read_b64_tr_b16 v[88:89], v80
    ds_read_b64_tr_b16 v[90:91], v80 offset:512
    ds_read_b64_tr_b16 v[92:93], v80 offset:1024
    ds_read_b64_tr_b16 v[94:95], v80 offset:1536
    v_mov_b32 v24, 0
    v_mov_b32 v25, 0
    v_mov_b32 v26, 0
    v_mov_b32 v27, 0
    v_mfma_f32_16x16x32_bf16 v[96:99], v[88:91], v[16:19], 0
    v_mfma_f32_16x16x32_bf16 v[100:103], v[88:91], v[20:23], 0""")
    for j in range(4):
        k(f"v_dot2c_f32_bf16 v24, v{88+j}, v87\nv_dot2c_f32_bf16 v25, v{88+j}, v{88+j}")
    k("""v_mfma_f32_16x16x32_bf16 v[104:107], v[92:95], v[16:19], 0
    v_mfma_f32_16x16x32_bf16 v[108:111], v[92:95], v[20:23], 0""")
    for j in range(4):
        k(f"v_dot2c_f32_bf16 v26, v{92+j}, v87\nv_dot2c_f32_bf16 v27, v{92+j}, v{92+j}")
    k("""v_permlane32_swap_b32 v24, v25
    v_add_f32 v24, v24, v25
    v_permlane32_swap_b32 v26, v27
    v_add_f32 v26, v26, v27
    v_permlane16_swap_b32 v24, v26
    v_add_f32 v24, v24, v26""")
    for sh in (8, 4, 2, 1):
        k(f"v_add_f32_dpp v24, v24, v24 row_ror:{sh} row_mask:0xf bank_mask:0xf")
    k("""v_readlane_b32 s44, v24, 0
    v_readlane_b32 s45, v24, 16
    v_mov_b32 v25, v24""")
    for r in range(4): k(f"v_fma_f32 v{96+r}, -v11, s44, v{96+r}")
    k("v_permlane32_swap_b32 v24, v25")
    for r in range(4): k(f"v_cvt_pk_bf16_f32 v{88+r}, v{96+r}, v{100+r}")
    k("ds_write_b128 v81, v[88:91]")
    for r in range(4): k(f"v_fma_f32 v{104+r}, -v11, s45, v{104+r}")
    k(f"""v_mul_f32 v24, {f2h(1/512)}, v24
    v_mul_f32 v25, {f2h(1/512)}, v25""")
    for r in range(4): k(f"v_cvt_pk_bf16_f32 v{92+r}, v{104+r}, v{108+r}")
    k("ds_write_b128 v81, v[92:95] offset:16")
    k(f"""v_fma_f32 v25, -v24, v24, v25
    v_max_f32 v25, 0, v25
    v_add_f32 v25, {f2h(1e-5)}, v25
    v_rsq_f32 v25, v25
    ds_write_b32 v84, v25""")
    k.wait_lds()
    k("s_barrier")
    k(f"""s_mov_b64 exec, s[40:41]
    ds_read_b128 v[64:67], v82
    ds_read_b128 v[72:75], v82 offset:{2*528}
    s_mov_b64 exec, s[42:43]
    ds_read_b128 v[68:71], v82 offset:528
    ds_read_b128 v[76:79], v82 offset:{3*528}
    s_mov_b64 exec, -1
    ds_read_b128 v[28:31], v83""")
    for p in range(2):
        for part in range(2):
            d = 96 + 8*p + 4*part
            k(f"v_mfma_f32_16x16x32_bf16 v[{d}:{d+3}], v[{64+8*p}:{67+8*p}], v[{32+16*p+4*part}:{35+16*p+4*part}], 0")
    for p in range(2):
        for part in range(2):
            d = 96 + 8*p + 4*part
            k(f"v_mfma_f32_16x16x32_bf16 v[{d}:{d+3}], v[{68+8*p}:{71+8*p}], v[{40+16*p+4*part}:{43+16*p+4*part}], v[{d}:{d+3}]")
    for p in range(2):
        d = 96 + 8*p
        for q in range(4):
            k(f"v_pk_mul_f32 v[{d+2*q}:{d+2*q+1}], v[{d+2*q}:{d+2*q+1}], v[{28+2*(q&1)}:{29+2*(q&1)}]")
        for r in range(4):
            k(f"v_cvt_pk_bf16_f32 v{88+4*p+r}, v{d+r}, v{d+4+r}")
        k(f"buffer_store_dwordx4 v[{88+4*p}:{91+4*p}], v85, s[32:35], s{37+p} offen")
    if diag:
        k(f"""s_add_u32 s12, s20, {WS_DBG + 0x80000 - 56}
        s_addc_u32 s13, s21, 0
        s_waitcnt vmcnt(0)
        s_memrealtime s[72:73]
        s_waitcnt lgkmcnt(0)
        s_mov_b32 s14, 64
        s_mov_b32 s15, 0x20000
        s_lshl_b32 s16, s2, 2
        s_add_u32 s16, s16, s3
        s_cmp_eq_u32 s16, {37*4}
        s_cselect_b32 s16, 0, 0x7ff00000
        v_mov_b32 v3, 0
        v_mov_b32 v4, s70
        buffer_store_dword v4, v3, s[12:15], s16 offen offset:56
        v_mov_b32 v4, s72
        buffer_store_dword v4, v3, s[12:15], s16 offen offset:60""")
    k("s_endpgm")
    k.label("k1_extras")
    k.mark("reset")
    k("""s_sub_u32 s3, s3, 4
    s_lshl_b32 s24, s3, 6
    v_add_u32 v1, s24, v0
    s_waitcnt lgkmcnt(0)""")
    srd(k, 28, 6, 7, 2048*514)
    srd(k, 32, 8, 9, 2048*514)
    srd(k, 36, 20, 21, 32*MB)
    k(f"""v_lshrrev_b32 v2, 4, v1
    v_and_b32 v3, 15, v1
    v_lshl_add_u32 v4, v3, 5, v2
    v_sub_u32 v5, 512, v4
    v_subrev_u32 v6, 240, v4
    v_cmp_eq_u32 vcc, 0, v2
    v_cndmask_b32 v5, v5, v6, vcc
    v_cmp_lt_u32 vcc, 7, v3
    v_cndmask_b32 v4, v4, v5, vcc
    v_lshlrev_b32 v4, 1, v4
    s_and_b32 s25, s22, 15
    s_lshr_b32 s26, s22, 6
    s_lshl_b32 s26, s26, 6
    s_add_u32 s25, s25, s26
    s_bfe_u32 s26, s22, 0x20004
    s_lshl_b32 s26, s26, 9
    s_add_u32 s25, s25, s26
    s_mul_i32 s26, s25, 514""")
    for r in range(4):
        for e in range(2):
            n = 2*r + e
            k(f"s_add_u32 s27, s26, {(16*r + 256*e)*514}")
            k(f"buffer_load_ushort v{16+n}, v4, s[28:31], s27 offen\nbuffer_load_ushort v{24+n}, v4, s[32:35], s27 offen")
    k(f"""s_lshl_b32 s40, s2, 2
    s_add_u32 s40, s40, s3
    s_cmp_ge_u32 s40, 696
    s_cselect_b32 s41, 1, 0
    s_cselect_b32 s40, 0, s40
    v_lshrrev_b32 v5, 3, v0
    v_and_b32 v6, 7, v0
    v_lshlrev_b32 v6, 4, v6
    s_cmp_ge_u32 s40, 352
    s_cbranch_scc1 k1_w2unit""")
    srd(k, 44, 12, 13, W_BYTES)
    srd(k, 48, 20, 21, W_BYTES, WS_W1P)
    k(f"""v_lshrrev_b32 v7, 1, v5
    v_and_b32 v5, 1, v5
    v_lshl_add_u32 v5, v7, 4, v5
    v_mul_u32_u24 v5, 2752, v5
    s_and_b32 s52, s40, 15
    s_lshr_b32 s53, s40, 4
    s_and_b32 s54, s52, 1
    s_lshl_b32 s54, s54, 8
    s_and_b32 s55, s52, 14
    s_add_u32 s54, s54, s55
    s_mul_i32 s54, s54, 2752
    s_lshl_b32 s55, s53, 7
    s_add_u32 s54, s54, s55
    s_mov_b32 s55, {64*2752}
    s_lshl_b32 s56, s53, 16
    s_lshl_b32 s57, s52, 10
    s_add_u32 s56, s56, s57
    s_mov_b32 s57, 16384
    s_branch k1_unit""")
    k.label("k1_w2unit")
    srd(k, 44, 16, 17, W_BYTES)
    srd(k, 48, 20, 21, W_BYTES, WS_W2P)
    k(f"""v_lshrrev_b32 v7, 2, v5
    v_and_b32 v5, 3, v5
    v_lshl_add_u32 v5, v7, 4, v5
    v_lshlrev_b32 v5, 10, v5
    s_sub_u32 s40, s40, 352
    s_and_b32 s52, s40, 7
    s_lshr_b32 s53, s40, 3
    s_lshl_b32 s54, s53, 15
    s_lshl_b32 s55, s52, 7
    s_add_u32 s54, s54, s55
    s_mov_b32 s55, 4096
    s_mul_i32 s56, s52, 43
    s_add_u32 s56, s56, s53
    s_lshl_b32 s56, s56, 12
    s_mov_b32 s57, 1024""")
    k.label("k1_unit")
    LP = 20480
    k(f"""v_add_u32 v5, v5, v6
    s_lshl_b32 s58, s3, 12
    s_add_u32 s58, s58, {LP}
    s_cmp_lg_u32 s41, 0
    s_cselect_b32 s56, 0x7ff00000, s56""")
    for m in range(4):
        k(f"s_add_u32 m0, s58, {1024*m}")
        k(f"buffer_load_dwordx4 v5, s[44:47], s54 offen lds", tag="pp")
        if m < 3: k("s_add_u32 s54, s54, s55")
    k(f"""v_mov_b32 v8, -1
    v_mov_b32 v9, -1
    v_mov_b32 v10, -1
    v_mov_b32 v11, -1
    v_lshlrev_b32 v7, 4, v1
    s_lshl_b32 s27, s2, 13
    s_add_u32 s27, s27, {WS_ZP}
    buffer_store_dwordx4 v[8:11], v7, s[36:39], s27 offen
    s_add_u32 s27, s27, 4096
    buffer_store_dwordx4 v[8:11], v7, s[36:39], s27 offen
    v_mov_b32 v12, 0
    v_lshlrev_b32 v13, 2, v1
    v_cmp_gt_u32 vcc, 32, v1
    v_mov_b32 v14, 0x7ff00000
    v_cndmask_b32 v13, v14, v13, vcc
    s_lshl_b32 s27, s2, 7
    s_add_u32 s27, s27, {WS_FL}
    buffer_store_dword v12, v13, s[36:39], s27 offen""")
    if k2_bytes:
        k(f"""s_getpc_b64 s[60:61]""")
        k.label("k1_pc")
        k(f"""s_add_u32 s60, s60, {k2_label}-k1_pc
        s_addc_u32 s61, s61, 0
        v_lshlrev_b32 v15, 7, v1""")
        for j in range((k2_bytes + 32767)//32768):
            k(f"v_min_u32 v14, {k2_bytes - 4}, v15\nglobal_load_dword v40, v14, s[60:61]\nv_add_u32 v15, 32768, v15")
    k(f"""v_lshrrev_b32 v41, 1, v0
    v_and_b32 v42, 1, v0
    v_lshlrev_b32 v41, 4, v41
    v_lshl_add_u32 v41, v42, 8, v41
    v_add_u32 v41, s25, v41
    v_sub_u32 v42, 2048, v41
    v_and_b32 v42, 2047, v42
    v_mul_u32_u24 v41, 514, v41
    v_mul_u32_u24 v42, 514, v42
    v_cmp_gt_u32 vcc, 8, v1
    v_mov_b32 v14, 0x7ff00000
    v_cndmask_b32 v41, v14, v41, vcc
    v_cndmask_b32 v42, v14, v42, vcc
    buffer_load_ushort v44, v41, s[28:31], 0 offen
    buffer_load_ushort v45, v41, s[32:35], 0 offen
    buffer_load_ushort v46, v41, s[28:31], 0 offen offset:512
    buffer_load_ushort v47, v41, s[32:35], 0 offen offset:512
    buffer_load_ushort v48, v42, s[28:31], 0 offen
    buffer_load_ushort v49, v42, s[32:35], 0 offen
    buffer_load_ushort v50, v42, s[28:31], 0 offen offset:512
    buffer_load_ushort v51, v42, s[32:35], 0 offen offset:512""")
    k(f"""v_lshrrev_b32 v2, 2, v1
    v_lshlrev_b32 v2, 15, v2
    v_and_b32 v3, 3, v1
    v_lshl_add_u32 v2, v3, 5, v2
    v_cmp_ne_u32 vcc, 0, v1
    v_cndmask_b32 v2, v14, v2, vcc
    s_lshl_b32 s27, s22, 7
    s_add_u32 s27, s27, {WS_WT}""")
    for n in range(8): k(f"v_lshl_or_b32 v{16+n}, v{24+n}, 16, v{16+n}")
    k("buffer_store_dwordx4 v[16:19], v2, s[36:39], s27 offen\nbuffer_store_dwordx4 v[20:23], v2, s[36:39], s27 offen offset:16")
    k(f"""v_lshrrev_b32 v5, 4, v0
    v_lshlrev_b32 v5, 10, v5
    v_bfe_u32 v6, v0, 2, 2
    v_lshl_add_u32 v5, v6, 7, v5
    v_and_b32 v6, 3, v0
    v_lshl_add_u32 v5, v6, 3, v5
    v_add_u32 v5, s58, v5
    v_lshlrev_b32 v6, 4, v0""")
    k.wait_tag("pp")
    for t in range(4):
        k(f"ds_read_b64_tr_b16 v[{56+4*t}:{57+4*t}], v5 offset:{32*t}\nds_read_b64_tr_b16 v[{58+4*t}:{59+4*t}], v5 offset:{32*t+512}")
    for t in range(4):
        k(f"buffer_store_dwordx4 v[{56+4*t}:{59+4*t}], v6, s[48:51], s56 offen")
        if t < 3: k("s_add_u32 s56, s56, s57")
    for n in range(8): k(f"v_lshlrev_b32 v{44+n}, 16, v{44+n}")
    k(f"""v_add_f32 v44, v44, v48
    v_sub_f32 v45, v45, v49
    v_add_f32 v46, v46, v50
    v_sub_f32 v47, v47, v51
    v_add_f32 v48, v44, v46
    v_add_f32 v49, v45, v47
    v_sub_f32 v50, v44, v46
    v_sub_f32 v51, v45, v47
    v_mul_f32 v48, {f2h(0.25)}, v48
    v_mul_f32 v49, {f2h(0.25)}, v49
    v_mul_f32 v50, {f2h(0.25)}, v50
    v_mul_f32 v51, {f2h(0.25)}, v51
    v_cvt_pk_bf16_f32 v48, v48, v49
    v_cvt_pk_bf16_f32 v50, v50, v51
    v_lshlrev_b32 v41, 2, v1
    v_cmp_gt_u32 vcc, 8, v1
    v_cndmask_b32 v41, v14, v41, vcc
    buffer_store_dword v48, v41, s[36:39], s27 offen
    s_lshl_b32 s27, s22, 5
    s_add_u32 s27, s27, {WS_WB}
    buffer_store_dword v50, v41, s[36:39], s27 offen""")
    k.label("k1_end")
    k("s_endpgm")
    return k

if __name__ == "__main__":
    which = sys.argv[1] if len(sys.argv) > 1 else "k1"
    if which == "k1":
        k1 = gen_k1()
        print("; @launch kernel=k1_kernel grid=(256,1,1) block=(512,1,1) lds=36864")
        print('.amdgcn_target "amdgcn-amd-amdhsa--gfx950"')
        print(k1.text())
        print('.section .rodata,"a"')
        print(kd("k1_kernel", 112, 112))
```

```python
from asmgen import *
from gen import *

OOB = 0x7ff00000
LB1, LB2, LSP, LC, LST, LH, LRD = 0, 8192, 16384, 32768, 40960, 65536, 0
K2_LDS = 131072
MF = "v_mfma_f32_16x16x32_bf16"; MF16 = "v_mfma_f32_16x16x16_bf16"
def R(b, n=4, f="v"): return f"{f}[{b}:{b+n-1}]"

def gen_k2(diag=False, opt=None):
    opt = opt or {}
    k = Kernel("k2_kernel")
    slow = []
    nst = [0]
    def stamp():
        if diag:
            k(f"s_memtime s[{72+2*nst[0]}:{73+2*nst[0]}]"); k.ins[-1].kind = "salu"; nst[0] += 1
    def poll(loads, check, name):
        k(check)
        k(f"s_cbranch_vccnz {name}_retry")
        k.label(f"{name}_ok")
        slow.append((name, loads, check))
    k("s_cmp_ge_u32 s2, 256\ns_cbranch_scc1 k2_end")
    stamp()
    if diag: k("s_memrealtime s[98:99]"); k.ins[-1].kind = "salu"
    k("""s_load_dwordx2 s[4:5], s[0:1], 0
    s_load_dwordx2 s[6:7], s[0:1], 40
    s_load_dwordx4 s[8:11], s[0:1], 56
    s_load_dwordx2 s[20:21], s[0:1], 80
    v_lshrrev_b32 v1, 6, v0
    v_mov_b32 v2, v0
    v_and_b32 v0, 63, v0
    v_readfirstlane_b32 s3, v1
    s_getreg_b32 s71, hwreg(HW_REG_XCC_ID)""")
    item_id(k, 22, 23)
    k(f"""s_lshr_b32 s23, s22, 3
    s_and_b32 s24, s22, 7
    s_and_b32 s71, s71, 15
    s_or_b32 s71, s71, 0x80
    v_lshlrev_b32 v3, 7, v2
    s_lshr_b32 s25, s22, 2
    s_lshl_b32 s25, s25, 15
    s_and_b32 s26, s22, 3
    s_lshl_b32 s26, s26, 5
    s_add_u32 s25, s25, s26
    s_add_u32 s26, s25, {WS_WT}
    v_lshlrev_b32 v4, 5, v2
    v_and_b32 v8, 15, v0
    v_lshrrev_b32 v9, 4, v0
    v_and_b32 v10, 7, v0
    v_bfe_u32 v11, v0, 3, 1
    v_lshlrev_b32 v12, 4, v0
    v_add_u32 v13, 4096, v12
    v_add_u32 v14, 8192, v12
    v_add_u32 v15, 12288, v12""")
    k(f"""v_and_b32 v5, 3, v10
    v_lshlrev_b32 v5, 7, v5
    v_lshrrev_b32 v6, 2, v10
    v_add_u32 v5, v5, v6
    v_lshlrev_b32 v5, 10, v5
    v_lshl_add_u32 v5, v9, 7, v5
    v_lshl_add_u32 v5, v11, 2, v5
    s_bfe_u32 s27, s22, 0x20004
    s_lshl_b32 s27, s27, 9
    s_and_b32 s56, s22, 15
    s_lshl_b32 s56, s56, 3
    s_add_u32 s27, s27, s56
    s_lshr_b32 s56, s22, 6
    s_lshl_b32 s56, s56, 1
    s_add_u32 s27, s27, s56
    s_lshl_b32 s27, s27, 10
    s_lshl_b32 s56, s3, 3
    s_add_u32 s27, s27, s56
    v_cmp_eq_u32 vcc, 0, v2
    v_mov_b32 v6, {OOB}
    v_cndmask_b32 v6, v6, 0, vcc
    v_mov_b32 v7, s71
    s_lshl_b32 s57, s23, 10
    s_add_u32 s57, s57, {WS_FL}
    s_lshl_b32 s56, s24, 2
    s_add_u32 s56, s56, s57
    s_waitcnt lgkmcnt(0)""")
    srd(k, 28, 20, 21, 32*MB)
    k("""buffer_load_dwordx4 v[16:19], v3, s[28:31], s25 offen
    buffer_load_dwordx4 v[20:23], v3, s[28:31], s25 offen offset:16
    buffer_load_dwordx4 v[24:27], v3, s[28:31], s26 offen
    buffer_load_dwordx4 v[28:31], v3, s[28:31], s26 offen offset:16
    buffer_store_dword v7, v6, s[28:31], s56 offen sc1""")
    srd(k, 52, 20, 21, 8192, WS_WB)
    k("s_cmp_eq_u32 s22, 0\ns_cselect_b32 s54, 8192, 0")
    k("""buffer_load_dwordx4 v[32:35], v4, s[52:55], 0 offen
    buffer_load_dwordx4 v[36:39], v4, s[52:55], 0 offen offset:16""")
    srd(k, 32, 4, 5, 2*MB)
    for t in range(2):
        for r in range(4):
            k(f"buffer_load_dword v{208+4*t+r}, v5, s[32:35], s27 offen offset:{512*t+32*r}")
    srd(k, 36, 20, 21, W_BYTES, WS_W1P)
    srd(k, 40, 6, 7, 2752)
    srd(k, 44, 8, 9, 1024)
    srd(k, 48, 10, 11, 2*MB)
    k(f"""s_lshr_b32 s61, s3, 1
    s_and_b32 s62, s3, 1
    s_mul_i32 s63, s61, 3
    s_lshl_b32 s64, s62, 1
    s_add_u32 s64, s64, s63
    s_mul_i32 s65, s24, 6
    s_add_u32 s64, s64, s65
    s_lshl_b32 s58, s64, 15
    s_add_u32 s59, s58, 16384
    s_add_u32 s65, s65, s63
    s_add_u32 s65, s65, 1
    s_lshl_b32 s60, s65, 1
    s_add_u32 s60, s60, s62
    s_lshl_b32 s60, s60, 14""")
    with k.capture() as w1loads:
        for kap in range(16):
            for tau in range(3):
                k(f"buffer_load_dwordx4 {R((tau*16+kap)*4, f='a')}, v{12+(kap>>2)}, s[36:39], s{58+tau} offen offset:{(kap&3)*1024}")
    n1 = opt.get("w1_first", 20)
    with k.capture() as cB:
        k(f"""v_cvt_f32_u32 v156, v8
        v_lshlrev_b32 v157, 2, v9
        v_cvt_f32_u32 v157, v157
        s_lshl_b32 s12, s3, 1
        v_cvt_f32_u32 v158, s12""")
        def mats(base, inv, lane_is_k, N1, N):
            for e in range(2):
                if lane_is_k:
                    k(f"v_mul_f32 v159, {f2h(1/N)}, v156\nv_add_f32 v160, {f2h(float(e))}, v158\nv_fmac_f32 v160, {f2h(float(N1))}, v157")
                else:
                    k(f"v_add_f32 v159, {f2h(float(e))}, v158\nv_fmac_f32 v159, {f2h(float(N1))}, v156\nv_mul_f32 v159, {f2h(1/N)}, v159\nv_mov_b32 v160, v157")
                for r in range(4):
                    if r: k(f"v_add_f32 v160, {f2h(float(N1) if lane_is_k else 1.0)}, v160")
                    a, b = 161 + 2*(r & 1), 162 + 2*(r & 1)
                    k(f"v_mul_f32 v{a}, v159, v160\nv_sin_f32 v{b}, v{a}\nv_cos_f32 v{a}, v{a}")
                    if r:
                        pa, pb = 161 + 2*((r-1) & 1), 162 + 2*((r-1) & 1)
                        pack(base + 8*e + r - 1, pa, pb, inv)
                pack(base + 8*e + 3, 163, 164, inv)
        def pack(d, co, si, inv):
            if inv: k(f"v_cvt_pk_bf16_f32 v{d}, v{co}, -v{si}\nv_cvt_pk_bf16_f32 v{d+4}, v{si}, v{co}")
            else: k(f"v_cvt_pk_bf16_f32 v{d}, v{co}, v{si}\nv_cvt_pk_bf16_f32 v{d+4}, -v{si}, v{co}")
        mats(56, False, True, 128, 2048)
        k(f"v_mul_f32 v159, {f2h(1/256)}, v156\nv_mov_b32 v160, v157")
        for r in range(4):
            if r: k("v_add_f32 v160, 1.0, v160")
            k(f"v_mul_f32 v161, v159, v160\nv_cos_f32 v{120+r}, v161\nv_sin_f32 v{124+r}, v161")
        mats(72, False, True, 8, 128)
        k(f"""v_lshrrev_b32 v159, 1, v8
        v_cvt_f32_u32 v159, v159
        v_mul_f32 v159, {f2h(1/8)}, v159
        v_and_b32 v160, 1, v8
        v_cvt_f32_u32 v160, v160
        v_mul_f32 v160, {f2h(0.25)}, v160
        v_mul_f32 v165, 0.5, v157""")
        for e in range(2):
            if e: k("v_add_f32 v165, 1.0, v165")
            k(f"""v_fma_f32 v161, v159, v165, v160
            v_fma_f32 v163, -v159, v165, v160
            v_sin_f32 v162, v161
            v_cos_f32 v161, v161
            v_sin_f32 v164, v163
            v_cos_f32 v163, v163
            v_cvt_pk_bf16_f32 v{128+e}, v161, v162
            v_mul_f32 v163, {f2h(2.0**-19)}, v163
            v_mul_f32 v164, {f2h(2.0**-19)}, v164
            v_cvt_pk_bf16_f32 v{130+e}, v163, v164""")
        mats(88, True, False, 8, 128)
        mats(104, True, False, 128, 2048)
        k(f"""v_lshlrev_b32 v166, 10, v9
        v_lshl_add_u32 v166, v8, 4, v166
        s_lshl_b32 s12, s3, 8
        v_add_u32 v166, s12, v166
        s_lshl_b32 s12, s3, 10
        v_add_u32 v167, s12, v12
        v_lshrrev_b32 v168, 3, v2
        v_lshlrev_b32 v168, 8, v168
        v_lshl_add_u32 v168, v10, 4, v168
        s_lshl_b32 s13, s22, 13
        s_add_u32 s13, s13, {WS_ZP}""")
        for n in range(8):
            k(f"v_lshlrev_b32 v{40+2*n}, 16, v{24+n}\nv_and_b32 v{41+2*n}, 0xffff0000, v{24+n}")
    k.extend(interleave(cB, w1loads[:n1], every=opt.get("w1_every", 10)))
    stamp()
    def twiddle(sign):
        for e in range(2):
            re, im = 132 + 8*e, 136 + 8*e
            for q in range(2):
                a, b = 156 + 4*e + 2*q, 148 + 4*e + 2*q
                n1_, n2_ = ("neg_lo:[0,1,0] neg_hi:[0,1,0]", "") if sign > 0 else ("", "neg_lo:[0,1,0] neg_hi:[0,1,0]")
                k(f"""v_pk_mul_f32 {R(a,2)}, {R(re+2*q,2)}, {R(120+2*q,2)}
                v_pk_mul_f32 {R(b,2)}, {R(im+2*q,2)}, {R(120+2*q,2)}
                v_pk_fma_f32 {R(a,2)}, {R(im+2*q,2)}, {R(124+2*q,2)}, {R(a,2)} {n1_}
                v_pk_fma_f32 {R(b,2)}, {R(re+2*q,2)}, {R(124+2*q,2)}, {R(b,2)} {n2_}""")
            for r in range(4):
                k(f"v_cvt_pk_bf16_f32 v{16+4*e+r}, v{156+4*e+r}, v{148+4*e+r}")
    def stage(cbase, data_is_A):
        for e in range(2):
            for part in range(2):
                c_ = R(cbase + 8*e + 4*part); d_ = R(16 + 4*e)
                k(f"{MF} {R(132+8*e+4*part)}, {d_ if data_is_A else c_}, {c_ if data_is_A else d_}, 0")
    stage(56, True)
    twiddle(-1)
    stage(72, False)
    for e in range(2):
        for r in range(4): k(f"v_cvt_pk_bf16_f32 v{16+2*r+e}, v{132+8*e+r}, v{136+8*e+r}")
    k(f"ds_write_b128 v166, v[16:19] offset:{LB1}\nds_write_b128 v166, v[20:23] offset:{LB1+4096}")
    k.wait_lds(); k("s_barrier")
    k(f"ds_read_b128 v[16:19], v167 offset:{LB1}\nds_read_b128 v[20:23], v167 offset:{LB1+4096}")
    for r in range(4): k(f"{MF16} {R(132+4*r)}, v[128:129], {R(16+2*r,2)}, 0")
    for n in range(8):
        F = R(132+2*n, 2); W = R(40+2*n, 2); T = R(148+2*n, 2)
        k(f"v_pk_mul_f32 {T}, {F}, {W} op_sel:[0,0] op_sel_hi:[1,0]")
    for n in range(8):
        F = R(132+2*n, 2); W = R(40+2*n, 2); T = R(148+2*n, 2)
        k(f"v_pk_fma_f32 {T}, {F}, {W}, {T} op_sel:[1,1,0] op_sel_hi:[0,1,1] neg_lo:[0,1,0]")
    k("s_cmp_lg_u32 s22, 0")
    with k.skippable("s_cbranch_scc1"):
        k(f"""s_lshl_b32 s12, s3, 6
        v_lshl_add_u32 v169, v9, 9, v8
        v_add_u32 v169, s12, v169
        v_lshlrev_b32 v170, 3, v169""")
        for n in range(8):
            k(f"ds_write_b64 v170, {R(132+2*n,2)} offset:{LSP + 8*(16*(n>>1) + 256*(n&1))}")
        k.wait_lds(); k("s_barrier")
        for n in range(8):
            k(f"""v_sub_u32 v170, {2048 - (16*(n>>1) + 256*(n&1))}, v169
            v_and_b32 v170, 2047, v170
            v_lshlrev_b32 v170, 3, v170
            ds_read_b64 {R(132+2*n,2)}, v170 offset:{LSP}
            v_lshlrev_b32 v{40+2*n}, 16, v{32+n}
            v_and_b32 v{41+2*n}, 0xffff0000, v{32+n}""")
        for n in range(8):
            F = R(132+2*n, 2); W = R(40+2*n, 2); T = R(148+2*n, 2)
            k(f"""v_pk_fma_f32 {T}, {F}, {W}, {T} op_sel:[0,0,0] op_sel_hi:[1,0,1] neg_hi:[1,0,0]
            v_pk_fma_f32 {T}, {F}, {W}, {T} op_sel:[1,1,0] op_sel_hi:[0,1,1]""")
    for n in range(8): k(f"v_cvt_pk_bf16_f32 v{16+n}, v{148+2*n}, v{149+2*n}")
    for r in range(4): k(f"{MF16} {R(132+4*r)}, v[130:131], {R(16+2*r,2)}, 0")
    for r in range(4):
        for e in range(2): k(f"v_cvt_pk_bf16_f32 v{24+4*e+r}, v{132+4*r+2*e}, v{133+4*r+2*e}")
    k(f"ds_write_b128 v166, v[24:27] offset:{LB2}\nds_write_b128 v166, v[28:31] offset:{LB2+4096}")
    k.wait_lds(); k("s_barrier")
    k(f"ds_read_b128 v[16:19], v167 offset:{LB2}\nds_read_b128 v[20:23], v167 offset:{LB2+4096}")
    stage(88, True)
    twiddle(+1)
    stage(104, False)
    for e in range(2):
        for r in range(4): k(f"v_cvt_pk_bf16_f32 v{24+4*e+r}, v{132+8*e+r}, v{136+8*e+r}")
        k(f"buffer_store_dwordx4 {R(24+4*e)}, v168, s[28:31], s13 offen offset:{128*e} sc1")
    stamp()
    with k.capture() as cC:
        k(f"""v_cvt_f32_u32 v248, v8
        v_lshlrev_b32 v249, 2, v9
        v_cvt_f32_u32 v249, v249
        v_mul_f32 v250, {f2h(1/16)}, v248
        v_cmp_lt_u32 vcc, 1, v9
        v_mov_b32 v251, 0x80000000
        v_cndmask_b32 v251, 0, v251, vcc""")
        for r in range(4):
            k(f"""v_add_f32 v252, {f2h(float(r))}, v249
            v_mul_f32 v252, v252, v250
            v_sin_f32 v253, v252
            v_cos_f32 v252, v252
            v_cvt_pk_bf16_f32 v{144+r}, v252, -v253
            v_cvt_pk_bf16_f32 v{148+r}, v253, v252
            v_xor_b32 v{144+r}, v251, v{144+r}
            v_xor_b32 v{148+r}, v251, v{148+r}""")
        k(f"""s_lshl_b32 s12, s3, 2
        v_cvt_f32_u32 v250, s12
        v_fmac_f32 v250, {f2h(16.0)}, v248
        v_mul_f32 v250, {f2h(1/512)}, v250
        v_mul_f32 v254, 0.5, v248
        v_mov_b32 v255, {f2h(0.25)}
        v_cmp_eq_u32 vcc, 0, v9
        v_cndmask_b32 v254, v255, v254, vcc""")
        for n in range(4):
            for t in range(2):
                d = 160 + 8*n + 4*t
                k(f"v_add_f32 v251, {f2h((256*t + n)/512)}, v250")
                k(f"""v_mul_f32 v240, v249, v251
                v_add_f32 v241, v240, v254
                v_add_f32 v242, v240, v251
                v_cos_f32 v240, v240
                v_cos_f32 v241, v241
                v_add_f32 v244, v242, v251
                v_sin_f32 v243, v242
                v_cos_f32 v242, v242
                v_add_f32 v246, v244, v251
                v_sin_f32 v245, v244
                v_cos_f32 v244, v244
                v_cvt_pk_bf16_f32 v{d}, v240, v241
                v_sin_f32 v247, v246
                v_cos_f32 v246, v246
                v_cvt_pk_bf16_f32 v{d+1}, v242, -v243
                v_cvt_pk_bf16_f32 v{d+2}, v244, -v245
                v_cvt_pk_bf16_f32 v{d+3}, v246, -v247""")
        for r in range(128, 144): k(f"v_mov_b32 v{r}, 0")
        for t in range(2):
            for r in range(4):
                k(f"v_lshlrev_b32 v{192+4*t+r}, 16, v{208+4*t+r}\nv_and_b32 v{200+4*t+r}, 0xffff0000, v{208+4*t+r}")
        k(f"""v_lshlrev_b32 v3, 18, v11
        v_lshl_add_u32 v3, v9, 15, v3
        v_lshrrev_b32 v4, 2, v10
        v_lshl_add_u32 v3, v4, 7, v3
        v_and_b32 v4, 3, v10
        v_lshl_add_u32 v3, v4, 2, v3
        s_lshl_b32 s12, s3, 19
        s_lshl_b32 s13, s23, 8
        s_add_u32 s12, s12, s13
        s_lshl_b32 s13, s24, 4
        s_add_u32 s12, s12, s13
        s_add_u32 s12, s12, {WS_ZP}
        s_add_u32 s13, s12, {8192}
        s_add_u32 s14, s12, {2*8192}
        s_add_u32 s15, s12, {3*8192}
        s_add_u32 s16, s12, {16*8192}
        s_add_u32 s17, s12, {17*8192}
        s_add_u32 s18, s12, {18*8192}
        s_add_u32 s19, s12, {19*8192}
        v_lshlrev_b32 v5, 4, v10
        v_lshl_add_u32 v4, v9, 11, v5
        v_lshl_add_u32 v4, v11, 3, v4
        s_lshl_b32 s66, s3, 7
        s_add_u32 s66, s66, {LC}
        v_add_u32 v4, s66, v4
        v_lshl_add_u32 v6, v9, 8, v5
        v_lshl_add_u32 v6, v11, 11, v6
        v_lshl_add_u32 v5, v9, 7, v5
        s_lshl_b32 s66, s3, 11
        s_add_u32 s66, s66, {LC}
        v_add_u32 v5, s66, v5
        v_lshlrev_b32 v1, 5, v10
        v_add_u32 v1, {LST}, v1
        v_lshrrev_b32 v7, 5, v0
        v_lshl_add_u32 v7, v7, 4, v1
        s_lshl_b32 s66, s3, 2
        v_add_u32 v7, s66, v7
        s_lshl_b32 s66, s23, 16
        s_lshr_b32 s67, s24, 1
        s_lshl_b32 s67, s67, 14
        s_add_u32 s67, s67, s66
        s_lshl_b32 s68, s3, 12
        s_add_u32 s67, s67, s68
        s_and_b32 s68, s24, 1
        s_lshl_b32 s68, s68, 7
        s_add_u32 s67, s67, s68
        s_add_u32 s68, s67, {WS_HH}
        s_add_u32 s67, s67, {WS_LN2}
        v_lshlrev_b32 v2, 2, v10
        v_mov_b32 v255, 0x3f803f80
        s_mov_b32 s4, 0x00ff00ff
        s_mov_b32 s5, 0x00ff00ff
        s_not_b64 s[6:7], s[4:5]""")
    idload = "buffer_load_dword v254, v2, s[28:31], s57 offen sc1"
    with k.capture() as rest:
        k.extend(w1loads[n1:])
    k.extend(interleave(cC, rest, every=opt.get("w1_every2", 8)))
    k("s_cmp_lg_u32 s3, 0")
    with k.skippable("s_cbranch_scc1"):
        k(f"""v_cmp_lt_u32 vcc, 1, v9
        v_mov_b32 v240, {f2h(-240.0)}
        v_cndmask_b32 v240, 0, v240, vcc
        v_fmac_f32 v240, {f2h(32.0)}, v249
        v_mul_f32 v241, {f2h(1/512)}, v248""")
        for r in range(4):
            k(f"""v_add_f32 v242, {f2h(32.0*r)}, v240
            v_mul_f32 v242, v242, v241
            v_sin_f32 v243, v242
            v_cos_f32 v242, v242
            v_cvt_pk_bf16_f32 v244, v242, -v243
            v_cndmask_b32 v{152+r}, v244, 0, vcc
            v_cndmask_b32 v{156+r}, 0, v244, vcc""")
        k(f"""v_and_b32 v242, 1, v8
        v_lshlrev_b32 v242, 31, v242
        v_or_b32 v242, 0x3f003f00, v242
        v_cmp_eq_u32 vcc, 0, v9
        v_cndmask_b32 v152, v152, v242, vcc""")
    k(idload)
    zl = "\n".join(f"buffer_load_dword v{216+n}, v3, s[28:31], s{12+n} offen sc1" for n in range(8))
    stamp()
    k(zl)
    poll(idload, "v_cmp_eq_u32 vcc, 0, v254", "pid")
    k("""v_cmp_ne_u32 vcc, s71, v254
    s_cmp_eq_u64 vcc, 0
    s_cselect_b32 s70, 1, 0""")
    if opt.get("force_slow"): k("s_mov_b32 s70, 0")
    poll(zl, """v_max3_u32 v240, v216, v217, v218
    v_max3_u32 v241, v219, v220, v221
    v_max3_u32 v240, v240, v222, v223
    v_max_u32 v240, v240, v241
    v_cmp_eq_u32 vcc, -1, v240""", "pz")
    stamp()
    k(f"{MF} {R(232)}, {R(144)}, {R(220)}, 0\n{MF} {R(236)}, {R(148)}, {R(220)}, 0")
    l_sp = k.newlabel("sp"); l_j = k.newlabel("j")
    k(f"{MF} {R(224)}, {R(144)}, {R(216)}, 0\n{MF} {R(228)}, {R(148)}, {R(216)}, 0")
    k("s_cmp_lg_u32 s3, 0")
    with k.skippable("s_cbranch_scc1"):
        k(f"{MF} {R(240)}, {R(152)}, {R(216)}, 0\n{MF} {R(244)}, {R(156)}, {R(216)}, 0")
        for r in range(8): k(f"v_cndmask_b32 v{224+r}, v{224+r}, v{240+r}, s[4:5]")
    for r in range(4):
        for p in range(2): k(f"v_cvt_pk_bf16_f32 v{240+2*r+p}, v{224+8*p+r}, v{228+8*p+r}")
        k(f"ds_write_b64 v4, {R(240+2*r,2)} offset:{512*r}")
    k.wait_lds(); k("s_barrier")
    k(f"""s_mov_b64 exec, s[4:5]
    ds_read_b128 {R(128)}, v5
    ds_read_b128 {R(132)}, v5 offset:512
    s_mov_b64 exec, s[6:7]
    ds_read_b128 {R(136)}, v5 offset:1024
    ds_read_b128 {R(140)}, v5 offset:1536
    s_mov_b64 exec, -1""")
    for hv in range(2):
        for e in range(2):
            for t in range(2):
                n = 2*hv + e
                k(f"{MF} {R(192+8*e+4*t)}, {R(160+8*n+4*t)}, {R(128+4*n)}, {R(192+8*e+4*t)}")
    k("v_mov_b32 v248, 0\nv_mov_b32 v249, 0\nv_mov_b32 v250, 0\nv_mov_b32 v251, 0")
    for t in range(2):
        for r in range(4): k(f"v_cvt_pk_bf16_f32 v{240+4*t+r}, v{192+4*t+r}, v{200+4*t+r}")
    for n in range(4):
        k(f"""v_dot2c_f32_bf16 v248, v{240+n}, v255
        v_dot2c_f32_bf16 v249, v{240+n}, v{240+n}
        v_dot2c_f32_bf16 v250, v{244+n}, v255
        v_dot2c_f32_bf16 v251, v{244+n}, v{244+n}""")
    k.dual("s70", [f"buffer_store_dwordx4 {R(240+4*t)}, v6, s[28:31], s68 offen offset:{1024*t}" for t in range(2)], "sc1", tag="x3")
    k("""v_add_f32 v248, v248, v250
    v_add_f32 v249, v249, v251
    v_permlane32_swap_b32 v248, v249
    v_add_f32 v248, v248, v249
    v_mov_b32 v249, v248
    v_permlane16_swap_b32 v248, v249
    v_add_f32 v248, v248, v249
    v_add_f32_dpp v248, v248, v248 row_ror:8 row_mask:0xf bank_mask:0xf
    ds_write_b32 v7, v248""")
    k.wait_lds(); k("s_barrier")
    k(f"""ds_read_b128 {R(224)}, v1
    ds_read_b128 {R(228)}, v1 offset:16
    v_add_f32 v224, v224, v225
    v_add_f32 v226, v226, v227
    v_add_f32 v228, v228, v229
    v_add_f32 v230, v230, v231
    v_add_f32 v224, v224, v226
    v_add_f32 v228, v228, v230
    v_mul_f32 v224, {f2h(1/512)}, v224
    v_mul_f32 v228, {f2h(1/512)}, v228
    v_fma_f32 v228, -v224, v224, v228
    v_max_f32 v228, 0, v228
    v_add_f32 v228, {f2h(1e-5)}, v228
    v_rsq_f32 v228, v228
    v_mul_f32 v229, -v224, v228""")
    for n in range(8):
        k(f"v_pk_fma_f32 {R(192+2*n,2)}, {R(192+2*n,2)}, v[228:229], v[228:229] op_sel:[0,0,1] op_sel_hi:[1,0,1]")
    for t in range(2):
        for r in range(4): k(f"v_cvt_pk_bf16_f32 v{216+4*t+r}, v{192+4*t+r}, v{200+4*t+r}")
    k.dual("s70", [f"buffer_store_dwordx4 {R(216+4*t)}, v6, s[28:31], s67 offen offset:{1024*t}" for t in range(2)], "sc1", tag="x3")
    stamp()
    k(f"""v_cmp_eq_u32 vcc, 0, v0
    v_mov_b32 v3, {OOB}
    v_cndmask_b32 v3, v3, 0, vcc
    v_mov_b32 v4, 1
    s_lshl_b32 s12, s24, 4
    s_lshl_b32 s13, s3, 2
    s_add_u32 s12, s12, s13
    s_add_u32 s12, s12, s57
    v_and_b32 v5, 31, v0
    v_lshlrev_b32 v5, 2, v5
    s_lshl_b32 s13, s3, 12
    s_add_u32 s14, s13, s66
    s_add_u32 s14, s14, {WS_LN2}
    s_add_u32 s15, s13, {LH}""")
    k.wait_tag("x3")
    k.dual("s70", ["buffer_store_dword v4, v3, s[28:31], s12 offen offset:128"], "sc1")
    f3 = "buffer_load_dword v6, v5, s[28:31], s57 offen offset:128 sc1"
    k(f3)
    k(f"""v_lshlrev_b32 v7, 3, v9
    s_lshr_b32 s16, s58, 9
    s_lshr_b32 s17, s60, 9
    buffer_load_dwordx2 v[80:81], v7, s[40:43], s16 offen
    buffer_load_dwordx2 v[82:83], v7, s[40:43], s16 offen offset:32
    buffer_load_dwordx2 v[84:85], v7, s[40:43], s17 offen
    s_lshl_b32 s16, s24, 7
    s_lshl_b32 s17, s3, 5
    s_add_u32 s16, s16, s17
    buffer_load_dwordx2 v[86:87], v7, s[44:47], s16 offen""")
    k(f"""v_and_b32 v2, 3, v10
    v_lshlrev_b32 v2, 7, v2
    v_lshrrev_b32 v1, 2, v10
    v_add_u32 v2, v2, v1
    v_lshl_add_u32 v2, v11, 3, v2
    v_lshlrev_b32 v2, 10, v2
    v_add_u32 v2, v2, v7
    s_bfe_u32 s17, s23, 0x20001
    s_lshl_b32 s17, s17, 9
    s_and_b32 s18, s23, 1
    s_lshl_b32 s18, s18, 6
    s_add_u32 s17, s17, s18
    s_lshr_b32 s18, s23, 3
    s_lshl_b32 s18, s18, 1
    s_add_u32 s17, s17, s18
    s_lshl_b32 s17, s17, 10
    s_add_u32 s17, s17, s16
    v_lshlrev_b32 v1, 12, v9
    v_lshl_add_u32 v1, v8, 4, v1
    s_lshr_b32 s18, s24, 2
    s_lshl_b32 s18, s18, 10
    s_and_b32 s19, s24, 3
    s_lshl_b32 s19, s19, 8
    s_add_u32 s18, s18, s19
    s_lshl_b32 s19, s3, 2
    s_add_u32 s18, s18, s19
    s_add_u32 s18, s18, s66
    s_add_u32 s18, s18, {WS_HH}
    s_mul_i32 s19, s23, {4*49152}
    s_add_u32 s19, s19, {WS_HID}
    s_lshl_b32 s64, s64, 10
    s_add_u32 s64, s64, s19
    s_lshl_b32 s65, s65, 10
    s_add_u32 s65, s65, s19
    s_lshl_b32 s62, s62, 3
    s_add_u32 s65, s65, s62
    s_mul_i32 s61, s3, 11
    s_lshl_b32 s62, s61, 10
    s_add_u32 s19, s19, s62
    s_mul_i32 s62, s24, 43
    s_add_u32 s61, s61, s62
    s_lshl_b32 s61, s61, 12
    s_add_u32 s61, s61, {WS_W2P}
    s_add_u32 s62, s61, {10*4096}
    s_cmp_eq_u32 s3, 3
    s_cselect_b32 s62, {OOB}, s62""")
    for sg in range(4):
        k(f"s_add_u32 s63, s3, {sg}\ns_and_b32 s63, s63, 3\ns_lshl_b32 s63, s63, 10\nv_add_u32 v{8+sg}, s63, v12")
    k(f"v_add_u32 v7, {LH}, v12")
    poll(f3, "v_cmp_eq_u32 vcc, 0, v6", "pf3")
    stamp()
    for rt in range(4):
        k(f"s_mov_b32 m0, s15")
        for m in range(4):
            k(f"buffer_load_dwordx4 v12, s[28:31], s14 offen offset:{1024*m} sc1 lds", tag=f"dma{rt}")
        if rt < 3: k("s_add_u32 s14, s14, 16384\ns_add_u32 s15, s15, 16384")
    for rt in range(4):
        for h in range(2):
            k(f"buffer_load_dword v{136+2*rt+h}, v1, s[28:31], s18 offen offset:{2048*h} sc1")
        if rt < 3: k("s_add_u32 s18, s18, 16384")
    for n in range(6):
        k(f"v_lshlrev_b32 v{16+2*n}, 16, v{80+n}\nv_and_b32 v{17+2*n}, 0xffff0000, v{80+n}")
    for n in range(2):
        k(f"v_lshlrev_b32 v{132+2*n}, 16, v{86+n}\nv_and_b32 v{133+2*n}, 0xffff0000, v{86+n}")
    def w2reg(s, sg): return R(192 + 16*s + 4*sg, f="a") if s < 4 else R(144 + 16*(s-4) + 4*sg)
    def w2loads(steps):
        with k.capture() as L:
            for s in steps:
                for sg in range(4):
                    k(f"buffer_load_dwordx4 {w2reg(s, sg)}, v{8+sg}, s[28:31], s{62 if s == 10 else 61} offen")
                if s < 9: k("s_add_u32 s61, s61, 4096")
        return L
    def hload(rt, s): return f"buffer_load_dwordx4 {R(88+4*s)}, v{12+(s>>2)}, s[28:31], s19 offen offset:{(s&3)*1024} sc1"
    def rd(rt, kap): return f"ds_read_b128 {R(28+4*(kap&3))}, v7 offset:{rt*16384+kap*1024}"
    def epi(rt):
        a = 44 + 12*(rt & 1)
        with k.capture() as L:
            for n in range(12): k(f"v_max_f32 v{68+n}, 0, v{a+n}")
            for n in range(12): k(f"v_mul_f32 v{68+n}, v{68+n}, v{a+n}")
            for n in range(6): k(f"v_cvt_pk_bf16_f32 v{80+n}, v{68+2*n}, v{69+2*n}")
            k.dual("s70", [f"buffer_store_dwordx4 v[80:83], v12, s[28:31], s64 offen", f"buffer_store_dwordx2 v[84:85], v12, s[28:31], s65 offen"], "sc1", tag=f"h{rt}")
            if rt < 3: k("s_add_u32 s64, s64, 49152\ns_add_u32 s65, s65, 49152")
        return L
    def flag4(rt):
        k.wait_tag(f"h{rt}")
        k.dual("s70", [f"buffer_store_dword v4, v3, s[28:31], s12 offen offset:{256+128*rt}"], "sc1")
    def f4(rt): return f"buffer_load_dword v6, v5, s[28:31], s57 offen offset:{256+128*rt} sc1"
    k.wait_tag("dma0"); k("s_barrier")
    for kap in range(3): k(rd(0, kap))
    stamp()
    w2sched = [[0, 1, 2], [3, 4, 5], [6, 7, 8], [9, 10]]
    for rt in range(4):
        a = 44 + 12*(rt & 1)
        with k.capture() as main:
            for kap in range(16):
                if kap == 12 and rt < 3:
                    k.wait_tag(f"dma{rt+1}"); k("s_barrier")
                if rt == 3 and kap == 4: k(f4(0))
                if rt == 3 and kap == 8:
                    poll(f4(0), "v_cmp_eq_u32 vcc, 0, v6", "pf40")
                    k(f4(1))
                for tau in range(3):
                    c_ = R(16+4*tau) if kap == 0 else R(a+4*tau)
                    k(f"{MF} {R(a+4*tau)}, {R((tau*16+kap)*4, f='a')}, {R(28+4*(kap&3))}, {c_}")
                    if rt == 3 and kap >= 8 and (kap-8)*3+tau < 22 and ((kap-8)*3+tau) % 2 == 0: k(hload(0, ((kap-8)*3+tau)//2))
                if kap + 3 < 16: k(rd(rt, kap+3))
                elif rt < 3: k(rd(rt+1, kap+3-16))
        fill = (epi(rt-1) if rt else []) + w2loads(w2sched[rt])
        k.extend(interleave(main, fill, every=1, per=2 if rt else 1, start=3, only="mfma"))
        if rt: flag4(rt-1)
    poll(f4(1), "v_cmp_eq_u32 vcc, 0, v6", "pf41")
    stamp()
    def red_a(rt):
        a = 16 + 16*(rt & 1)
        for sg in range(1, 4): k(f"ds_write_b128 v{8+sg}, {R(a+4*sg)} offset:{LRD + 12288*(rt&1) + 4096*(sg-1)}")
    def red_b(rt):
        a = 16 + 16*(rt & 1)
        k.wait_lds(); k("s_barrier")
        for sg in range(1, 4): k(f"ds_read_b128 {R(48+4*(sg-1))}, v8 offset:{LRD + 12288*(rt&1) + 4096*(sg-1)}")
        for h in range(2): k(f"v_lshlrev_b32 v{68+2*h}, 16, v{136+2*rt+h}\nv_and_b32 v{69+2*h}, 0xffff0000, v{136+2*rt+h}")
        for r in range(4): k(f"v_add_f32 v{68+r}, v{68+r}, v{132+r}")
        for r in range(4): k(f"v_add_f32 v{68+r}, v{68+r}, v{a+r}")
        for sg in range(3):
            for r in range(4): k(f"v_add_f32 v{68+r}, v{68+r}, v{48+4*sg+r}")
        k("v_cvt_pk_bf16_f32 v72, v68, v69\nv_cvt_pk_bf16_f32 v73, v70, v71")
        k("buffer_store_dwordx2 v[72:73], v2, s[48:51], s17 offen")
        if rt < 3: k("s_add_u32 s17, s17, 16384")
    for rt in range(4):
        a = 16 + 16*(rt & 1)
        with k.capture() as main:
            if rt < 3: k("s_add_u32 s19, s19, 49152")
            for s in range(11):
                if s == 7 and rt < 2: k(f4(rt+2))
                for sg in range(4):
                    k(f"{MF} {R(a+4*sg)}, {w2reg(s, sg)}, {R(88+4*s)}, {'0' if s == 0 else R(a+4*sg)}")
                if rt < 3: k(hload(rt+1, s))
        with k.capture() as fill:
            if rt == 0: k.extend(epi(3))
            else: red_a(rt-1); red_b(rt-1)
        k.extend(interleave(main, fill, every=1, per=2, start=3, only="mfma"))
        if rt == 0: flag4(3)
        if rt < 2: poll(f4(rt+2), "v_cmp_eq_u32 vcc, 0, v6", f"pf4{rt+2}")
    stamp()
    red_a(3); red_b(3)
    if diag:
        k.wait_vm_all(); stamp()
        k(f"""s_waitcnt lgkmcnt(0)
        s_lshl_b32 s12, s2, 9
        s_lshl_b32 s13, s3, 7
        s_add_u32 s12, s12, s13
        s_add_u32 s12, s12, {WS_DBG}""")
        for n in range(nst[0]):
            k(f"v_mov_b32 v4, s{72+2*n}\nbuffer_store_dword v4, v3, s[28:31], s12 offen offset:{4*n}")
    if diag:
        k(f"""s_load_dwordx2 s[12:13], s[0:1], 72
        s_memrealtime s[100:101]
        s_waitcnt lgkmcnt(0)
        s_mov_b32 s14, 64
        s_mov_b32 s15, 0x20000
        s_lshl_b32 s16, s2, 2
        s_add_u32 s16, s16, s3
        s_cmp_eq_u32 s16, {37*4}
        s_cselect_b32 s16, 0, {OOB}""")
        for n in range(1, nst[0]):
            k(f"s_sub_u32 s17, s{72+2*n}, s72\nv_mov_b32 v4, s17\nbuffer_store_dword v4, v3, s[12:15], s16 offen offset:{4*(n-1)}")
        k(f"s_mov_b32 s17, {WS_DBG + 0x80000}\nbuffer_load_dwordx2 v[6:7], v3, s[28:31], s17 offen\nbuffer_store_dwordx2 v[6:7], v3, s[12:15], s16 offen offset:56")
        k("v_mov_b32 v4, s98\nbuffer_store_dword v4, v3, s[12:15], s16 offen offset:48")
        k("v_mov_b32 v4, s100\nbuffer_store_dword v4, v3, s[12:15], s16 offen offset:52")
    k.label("k2_end")
    k("s_endpgm")
    for name, loads, check in slow:
        k.mark("reset")
        k.label(f"{name}_retry")
        k("s_mov_b32 s69, 0")
        k.label(f"{name}_loop")
        k(f"s_add_u32 s69, s69, 1\ns_cmp_gt_u32 s69, 4000\ns_cbranch_scc1 {name}_out")
        k(loads); k("s_waitcnt vmcnt(0)"); k(check)
        k(f"s_cbranch_vccnz {name}_loop")
        k.label(f"{name}_out")
        k(f"s_waitcnt vmcnt(0)\ns_nop 7\ns_branch {name}_ok")
    return k

def build_all(diag=False, opt=None):
    k2 = gen_k2(diag, opt); t2 = k2.text()
    nbytes = sum(0 if i.raw else 8 for i in k2.ins)
    k1 = gen_k1("k2_kernel", nbytes & ~127, diag); t1 = k1.text()
    return "\n".join(["; @launch kernel=k1_kernel grid=(256,1,1) block=(512,1,1) lds=36864",
        f"; @launch kernel=k2_kernel grid=(256,1,1) block=(256,1,1) lds={K2_LDS}",
        '.amdgcn_target "amdgcn-amd-amdhsa--gfx950"', t1, t2, ".fill 4096, 4, 0xbf800000", '.section .rodata,"a"',
        kd("k1_kernel", 112, 112), kd("k2_kernel", 512, 256, 102)]) + "\n"

if __name__ == "__main__":
    import sys, json
    diag = "diag" in sys.argv
    opt = json.loads(sys.argv[-1]) if sys.argv[-1].startswith("{") else {}
    sys.stdout.write(build_all(diag, opt))
```

```python
import sys, json
from asmgen import *
NAME = "sequential_preLN__spectral_gfnet__dense_activation_squared_relu__prompt_kernel"
MB = 1 << 20; KB = 1024
WS_EP, WS_FL, WS_WF, WS_WB, WS_X, WS_ALT, WS_DBG = 0, 4096, 128*KB, 192*KB, 1*MB, 12*MB, 24*MB
W_BYTES = 1376*KB
OOB = 0x7ff00000
GS = 262144
HT = 43*1024
LX, XP = 0, 1040
LE0 = 8320; LRS = LE0 + 16*528
LE1 = 17024
LST = 25216
LSP = 25472
LG = 41856
KP = 13504
LW2 = LG + 65536
RP = 5248
LRD = (0, LW2)
LDS_BYTES = LG + 8*KP
MF = "v_mfma_f32_16x16x32_bf16"; MF16 = "v_mfma_f32_16x16x16_bf16"
def R(b, n=4, f="v"): return f"{f}[{b}:{b+n-1}]"

def srd(k, Rr, lo, size, add=0):
    if add: k(f"s_add_u32 s{Rr}, s{lo}, {add}\ns_addc_u32 s{Rr+1}, s{lo+1}, 0")
    else: k(f"s_mov_b32 s{Rr}, s{lo}\ns_mov_b32 s{Rr+1}, s{lo+1}")
    k(f"s_mov_b32 s{Rr+2}, {size}\ns_mov_b32 s{Rr+3}, 0x20000")

def gen(diag=False, opt=None, code_bytes=32768):
    opt = opt or {}
    k = Kernel(NAME)
    slow = []; nst = [0]
    ALT = (WS_ALT - WS_X) if opt.get("no_overlay") else 0
    def stamp():
        if diag and nst[0] < 13:
            k(f"s_memtime s[{74+2*nst[0]}:{75+2*nst[0]}]"); k.ins[-1].kind = "salu"; nst[0] += 1
    def poll(loads, check, name, br="s_cbranch_vccnz"):
        k(check); k(f"{br} {name}_retry"); k.label(f"{name}_ok")
        slow.append((name, loads, check, br))
    def tagcheck(regs):
        return "\n".join(f"v_cmpx_eq_u32 vcc, s72, v{r}" for r in regs) + "\ns_cmp_eq_u64 exec, -1\ns_mov_b64 exec, -1"
    k("s_cmp_ge_u32 s2, 256\ns_cbranch_scc1 L_end")
    stamp()
    if diag: k("s_memrealtime s[100:101]"); k.ins[-1].kind = "salu"
    k("""s_load_dwordx2 s[20:21], s[0:1], 80
    s_load_dwordx4 s[4:7], s[0:1], 0
    s_load_dwordx2 s[8:9], s[0:1], 16
    s_load_dwordx8 s[12:19], s[0:1], 32
    s_load_dwordx2 s[10:11], s[0:1], 64
""")
    k("s_getpc_b64 s[62:63]")
    nl = (code_bytes + 127)//128; per = (nl + 31)//32
    k(f"""s_lshr_b32 s26, s2, 3
    s_mul_i32 s64, s26, {per*128}
    v_subrev_u32 v6, {opt.get("pf_head", 48)}, v0
    v_lshlrev_b32 v5, 7, v0
    v_min_u32 v4, {per-1}, v6
    v_lshlrev_b32 v4, 7, v4
    v_add_u32 v4, s64, v4
    v_cmp_gt_i32 vcc, 0, v6
    v_min_u32 v4, {code_bytes - 1024}, v4
    v_cndmask_b32 v4, v4, v5, vcc
    v_cmp_gt_u32 vcc, 64, v0
    s_and_saveexec_b64 s[66:67], vcc
    s_cbranch_execz L_nopf
    global_load_dword v152, v4, s[62:63]""")
    k.label("L_nopf")
    k("s_mov_b64 exec, s[66:67]")
    k("""    v_lshrrev_b32 v2, 6, v0
    v_mov_b32 v1, v0
    v_and_b32 v0, 63, v0
    v_readfirstlane_b32 s3, v2
    s_getreg_b32 s71, hwreg(HW_REG_XCC_ID)
    s_and_b32 s25, s2, 7
    s_bfe_u32 s24, s2, 0x30003
    s_lshr_b32 s26, s2, 3
    s_lshr_b32 s27, s2, 6
    s_lshl_b32 s23, s25, 2
    s_add_u32 s23, s23, s27
    s_lshl_b32 s22, s23, 3
    s_add_u32 s22, s22, s24""")
    k(f"""s_and_b32 s56, s23, 3
    s_lshl_b32 s56, s56, 9
    s_lshl_b32 s57, s24, 4
    s_add_u32 s56, s56, s57
    s_lshr_b32 s57, s23, 3
    s_lshl_b32 s57, s57, 1
    s_add_u32 s56, s56, s57
    s_bfe_u32 s57, s23, 0x10002
    s_add_u32 s73, s56, s57
    s_and_b32 s57, s3, 1
    s_lshl_b32 s57, s57, 8
    s_add_u32 s56, s73, s57
    s_lshr_b32 s57, s3, 1
    s_lshl_b32 s57, s57, 3
    s_add_u32 s56, s56, s57
    s_lshl_b32 s56, s56, 10
    s_add_u32 s57, s56, 131072
    s_mul_i32 s58, s3, {2*XP}
    v_lshlrev_b32 v12, 4, v0
    v_and_b32 v8, 15, v0
    v_lshrrev_b32 v9, 4, v0
    v_and_b32 v10, 7, v0
    v_bfe_u32 v11, v0, 3, 1""")
    k(f"""s_and_b32 s60, s22, 15
    s_lshr_b32 s61, s22, 6
    s_lshl_b32 s61, s61, 6
    s_add_u32 s60, s60, s61
    s_bfe_u32 s61, s22, 0x20004
    s_lshl_b32 s61, s61, 9
    s_add_u32 s60, s60, s61
    s_mul_i32 s61, s60, 514
    s_lshl_b32 s59, s3, 7
    s_add_u32 s61, s61, s59
    v_mul_u32_u24 v3, {16*514}, v9
    v_mul_u32_u24 v2, {256*514}, v11
    v_add_u32 v3, v3, v2
    v_lshl_add_u32 v3, v10, 4, v3
    s_lshl_b32 s59, s3, 11
    s_add_u32 s59, s59, {LSP}
    s_waitcnt lgkmcnt(0)
    s_load_dword s72, s[20:21], {WS_EP}""")
    k.ins[-1].kind = "salu"
    srd(k, 32, 4, 2*MB)
    k("s_mov_b32 m0, s58")
    k("buffer_load_dwordx4 v12, s[32:35], s56 offen lds", tag="x")
    k(f"s_add_u32 m0, s58, {XP}")
    k("buffer_load_dwordx4 v12, s[32:35], s57 offen lds", tag="x")
    srd(k, 36, 6, 2048*514)
    srd(k, 40, 8, 2048*514)
    k("s_mov_b32 m0, s59")
    k("buffer_load_dwordx4 v3, s[36:39], s61 offen lds", tag="W")
    k(f"s_add_u32 m0, s59, 1024")
    k("buffer_load_dwordx4 v3, s[40:43], s61 offen lds", tag="W")
    srd(k, 28, 20, 32*MB)
    k(f"""v_mov_b32 v196, -1
    v_mov_b32 v197, -1
    v_mov_b32 v198, -1
    v_mov_b32 v199, -1
    v_lshlrev_b32 v2, 4, v1
    s_lshl_b32 s64, s23, 18
    s_lshl_b32 s68, s24, 13
    s_add_u32 s64, s64, s68
    s_add_u32 s64, s64, {WS_X + 131072}
    s_add_u32 s68, s64, 4096""")
    k("buffer_store_dwordx4 v[196:199], v2, s[28:31], s64 offen sc1\nbuffer_store_dwordx4 v[196:199], v2, s[28:31], s68 offen sc1", tag="clr")
    srd(k, 44, 12, W_BYTES)
    srd(k, 48, 16, W_BYTES)
    srd(k, 52, 10, 2*MB)
    def touch(name, dst):
        with k.capture() as L:
            if name[:2] == "w1":
                nl = 43
                k(f"s_mul_i32 s64, s26, {16*2752}\ns_mul_i32 s68, s3, {43*128}\ns_add_u32 s64, s64, s68")
                if name == "w1b": k(f"s_add_u32 s64, s64, {8*2752}")
            else:
                nl = 48 if name == "w2a" else 40
                k(f"""s_lshr_b32 s64, s26, 3
                s_mul_i32 s64, s64, {352*1024}
                s_and_b32 s68, s26, 7
                s_lshl_b32 s68, s68, 2
                s_add_u32 s68, s68, s3
                s_mul_i32 s68, s68, {nl*128}
                s_add_u32 s64, s64, s68""")
                if name == "w2b": k(f"s_add_u32 s64, s64, {192*1024}")
            sr = 44 if name[:2] == "w1" else 48
            k(f"""v_min_u32 v6, {nl-1}, v0
            v_lshlrev_b32 v6, 7, v6
            buffer_load_dword v{dst}, v6, s[{sr}:{sr+3}], s64 offen""")
        return [] if name in opt.get("skip", []) else L
    with k.capture() as early:
        k(f"""v_bfe_u32 v4, v0, 3, 2
        v_lshlrev_b32 v4, 4, v4
        v_bfe_u32 v5, v0, 2, 1
        v_lshl_add_u32 v4, v5, 8, v4
        v_add_u32 v4, s60, v4
        v_sub_u32 v5, 2048, v4
        v_and_b32 v5, 2047, v5
        v_and_b32 v6, 1, v0
        v_mul_u32_u24 v5, v5, v6
        v_xor_b32 v6, 1, v6
        v_mad_u32_u24 v4, v4, v6, v5
        v_mul_u32_u24 v4, 514, v4
        v_bfe_u32 v5, v0, 1, 1
        v_lshl_add_u32 v4, v5, 9, v4
        v_lshrrev_b32 v5, 5, v1
        v_min_u32 v5, 1, v5
        v_lshl_add_u32 v4, v5, 30, v4
        buffer_load_ushort v144, v4, s[36:39], 0 offen
        buffer_load_ushort v145, v4, s[40:43], 0 offen""")
        k(f"""s_lshl_b32 s65, s23, 11
        s_add_u32 s65, s65, {WS_FL}
        v_min_u32 v6, 9, v1
        v_lshlrev_b32 v6, 7, v6
        buffer_load_dword v153, v6, s[28:31], s65 offen""")
    with k.capture() as cA:
        k(f"""v_cvt_f32_u32 v24, v8
        v_lshlrev_b32 v25, 2, v9
        v_cvt_f32_u32 v25, v25
        v_mul_f32 v26, {f2h(1/32)}, v24
        v_cmp_eq_u32 vcc, 0, v8
        v_mov_b32 v27, 0.5
        v_mov_b32 v28, {f2h(0.25)}
        v_mov_b32 v87, {f2h(1/16)}
        v_cndmask_b32 v27, v26, v27, vcc
        v_cndmask_b32 v28, v28, 0, vcc
        v_cndmask_b32 v87, 0, v87, vcc""")
        for jp in range(4):
            for q in range(2):
                j = 2*jp + q
                k(f"""v_add_f32 v29, {f2h(float((j & 3) + 16*(j >> 2)))}, v25
                v_mul_f32 v{88+q}, v29, v26
                v_fma_f32 v{90+q}, v29, v27, v28
                v_cos_f32 v{88+q}, v{88+q}
                v_cos_f32 v{90+q}, v{90+q}""")
            k(f"v_cvt_pk_bf16_f32 v{16+jp}, v88, v89\nv_cvt_pk_bf16_f32 v{20+jp}, v90, v91")
        k(f"""s_lshl_b32 s66, s3, 2
        v_cvt_f32_u32 v26, s66
        v_fmac_f32 v26, {f2h(32.0)}, v24
        v_mul_f32 v26, {f2h(1/512)}, v26
        v_cmp_lt_u32 vcc, 7, v8
        v_mov_b32 v27, 0x80008000
        v_cndmask_b32 v27, 0, v27, vcc""")
        for n in range(4):
            k(f"""v_add_f32 v28, {f2h(n/512)}, v26
            v_mul_f32 v88, v25, v28
            v_add_f32 v90, v88, v28
            v_add_f32 v92, v90, v28
            v_add_f32 v94, v92, v28""")
            for r in range(4):
                k(f"v_sin_f32 v{89+2*r}, v{88+2*r}\nv_cos_f32 v{88+2*r}, v{88+2*r}")
            for r in range(4):
                k(f"""v_cvt_pk_bf16_f32 v{32+8*n+r}, v{88+2*r}, v{89+2*r}
                v_cvt_pk_bf16_f32 v{36+8*n+r}, -v{89+2*r}, v{88+2*r}
                v_xor_b32 v{36+8*n+r}, v27, v{36+8*n+r}""")
        for r in range(64, 80): k(f"v_mov_b32 v{r}, 0")
        k(f"""v_lshlrev_b32 v80, 3, v0
        v_add_u32 v80, s58, v80
        v_mul_u32_u24 v81, 528, v8
        v_lshl_add_u32 v81, v9, 7, v81
        s_lshl_b32 s66, s3, 5
        s_add_u32 s66, s66, {LE0}
        v_add_u32 v81, s66, v81
        v_lshlrev_b32 v82, 4, v10
        v_lshl_add_u32 v82, v9, 7, v82
        s_mul_i32 s66, s3, {4*528}
        s_add_u32 s66, s66, {LE0}
        v_add_u32 v82, s66, v82
        v_and_b32 v83, 1, v9
        v_lshlrev_b32 v84, 2, v83
        s_lshl_b32 s66, s3, 3
        s_add_u32 s66, s66, {LRS}
        v_add_u32 v84, s66, v84
        v_lshlrev_b32 v83, 2, v10
        v_add_u32 v83, {LRS}, v83
        v_lshlrev_b32 v204, 2, v9
        v_sub_u32 v205, 15, v204
        v_min_u32 v204, v204, v205
        v_lshrrev_b32 v205, 1, v9
        v_lshl_add_u32 v204, v204, 1, v205
        v_lshlrev_b32 v204, 19, v204
        v_lshl_add_u32 v204, v8, 3, v204
        v_lshlrev_b32 v205, 21, v205
        v_sub_u32 v85, {4*GS}, v205
        v_add_u32 v205, v204, v85
        v_add_u32 v206, v205, v85
        v_add_u32 v207, v206, v85
        s_lshr_b32 s66, s3, 1
        s_lshl_b32 s66, s66, 18
        s_and_b32 s67, s3, 1
        s_lshl_b32 s67, s67, 16
        s_add_u32 s66, s66, s67
        s_lshl_b32 s67, s22, 7
        s_add_u32 s66, s66, s67
        s_add_u32 s66, s66, {WS_X}
        s_add_u32 s67, s66, 32768
        v_bfe_u32 v200, v0, 2, 2
        v_lshlrev_b32 v200, 7, v200
        v_lshl_add_u32 v200, v9, 5, v200
        v_and_b32 v201, 3, v0
        v_lshl_add_u32 v200, v201, 3, v200
        v_add_u32 v200, s59, v200
        v_lshlrev_b32 v201, 4, v201
        v_bfe_u32 v202, v1, 2, 1
        v_lshl_add_u32 v201, v202, 15, v201
        v_lshrrev_b32 v202, 3, v1
        v_lshl_add_u32 v201, v202, 18, v201
        s_lshl_b32 s59, s22, 7
        s_add_u32 s59, s59, {WS_X + 196608}
        v_mov_b32 v86, 0x3f803f80
        s_mov_b32 s4, 0x00ff00ff
        s_mov_b32 s5, 0x00ff00ff
        s_not_b64 s[6:7], s[4:5]""")
    k.extend(interleave(cA, early + touch("w1a", 154), every=opt.get("early_every", 2)))
    k("s_cmp_lg_u32 s3, 0")
    with k.skippable("s_cbranch_scc1"):
        k(f"""v_cmp_lt_u32 vcc, 7, v8
        v_mul_f32 v26, {f2h(32/512)}, v24
        v_sub_f32 v28, {f2h(496/512)}, v26
        v_cndmask_b32 v26, v26, v28, vcc
        v_mov_b32 v27, 0xffff
        v_mov_b32 v28, 0xffff0000
        v_cndmask_b32 v27, v27, v28, vcc
        v_cmp_eq_u32 vcc, 0, v8""")
        for r in range(4):
            k(f"""v_add_f32 v29, {f2h(float(r))}, v25
            v_mul_f32 v88, v29, v26
            v_sin_f32 v89, v88
            v_cos_f32 v88, v88
            v_mov_b32 v28, {'1.0' if r & 1 else '-1.0'}
            v_cndmask_b32 v89, v89, v28, vcc
            v_cvt_pk_bf16_f32 v{32+r}, v88, v88
            v_cvt_pk_bf16_f32 v{36+r}, -v89, -v89
            v_and_b32 v{32+r}, v27, v{32+r}
            v_and_b32 v{36+r}, v27, v{36+r}""")
    k(f"""s_waitcnt lgkmcnt(0)
    s_add_u32 s72, s72, 0x9e3779b9
    s_and_b32 s71, s71, 15
    s_add_u32 s71, s71, s72
    v_cmp_eq_u32 vcc, 0, v1
    v_mov_b32 v6, {OOB}
    v_mov_b32 v2, s71
    v_cndmask_b32 v6, v6, 0, vcc
    s_lshl_b32 s64, s24, 2
    s_add_u32 s64, s64, s65
    buffer_store_dword v2, v6, s[28:31], s64 offen sc1""")
    for r in range(113, 128, 2): k(f"v_mov_b32 v{r}, s72")
    stamp()
    k.wait_tag("W")
    k(f"""ds_read_b64_tr_b16 v[88:89], v80
    ds_read_b64_tr_b16 v[90:91], v80 offset:512
    ds_read_b64_tr_b16 v[92:93], v80 offset:{XP}
    ds_read_b64_tr_b16 v[94:95], v80 offset:{XP+512}
    ds_read_b64_tr_b16 v[192:193], v200
    ds_read_b64_tr_b16 v[194:195], v200 offset:512
    ds_read_b64_tr_b16 v[196:197], v200 offset:1024
    ds_read_b64_tr_b16 v[198:199], v200 offset:1536
    v_mov_b32 v24, 0
    v_mov_b32 v25, 0
    v_mov_b32 v26, 0
    v_mov_b32 v27, 0
    {MF} v[96:99], v[88:91], v[16:19], 0
    {MF} v[100:103], v[88:91], v[20:23], 0""")
    for j in range(4): k(f"v_dot2c_f32_bf16 v24, v{88+j}, v86\nv_dot2c_f32_bf16 v25, v{88+j}, v{88+j}")
    k(f"{MF} v[104:107], v[92:95], v[16:19], 0\n{MF} v[108:111], v[92:95], v[20:23], 0")
    for j in range(4): k(f"v_dot2c_f32_bf16 v26, v{92+j}, v86\nv_dot2c_f32_bf16 v27, v{92+j}, v{92+j}")
    k("buffer_store_dwordx4 v[192:195], v201, s[28:31], s59 offen sc1", tag="wt")
    k("buffer_store_dwordx4 v[196:199], v201, s[28:31], s59 offen offset:64 sc1", tag="wt")
    k("""v_permlane32_swap_b32 v24, v25
    v_add_f32 v24, v24, v25
    v_permlane32_swap_b32 v26, v27
    v_add_f32 v26, v26, v27
    v_permlane16_swap_b32 v24, v26
    v_add_f32 v24, v24, v26""")
    for sh in (8, 4, 2, 1): k(f"v_add_f32_dpp v24, v24, v24 row_ror:{sh} row_mask:0xf bank_mask:0xf")
    k("v_readlane_b32 s56, v24, 0\nv_readlane_b32 s57, v24, 16\nv_mov_b32 v25, v24")
    for r in range(4): k(f"v_fma_f32 v{96+r}, -v87, s56, v{96+r}")
    k("v_permlane32_swap_b32 v24, v25")
    for r in range(4): k(f"v_cvt_pk_bf16_f32 v{88+r}, v{96+r}, v{100+r}")
    k("ds_write_b128 v81, v[88:91]")
    for r in range(4): k(f"v_fma_f32 v{104+r}, -v87, s57, v{104+r}")
    k(f"v_mul_f32 v24, {f2h(1/512)}, v24\nv_mul_f32 v25, {f2h(1/512)}, v25")
    for r in range(4): k(f"v_cvt_pk_bf16_f32 v{92+r}, v{104+r}, v{108+r}")
    k("ds_write_b128 v81, v[92:95] offset:16")
    k(f"""v_fma_f32 v25, -v24, v24, v25
    v_max_f32 v25, 0, v25
    v_add_f32 v25, {f2h(1e-5)}, v25
    v_rsq_f32 v25, v25
    ds_write_b32 v84, v25""")
    k.wait_tag("clr")
    k.wait_lds(); k("s_barrier")
    k(f"""s_mov_b64 exec, s[4:5]
    ds_read_b128 v[64:67], v82
    ds_read_b128 v[72:75], v82 offset:{2*528}
    s_mov_b64 exec, s[6:7]
    ds_read_b128 v[68:71], v82 offset:528
    ds_read_b128 v[76:79], v82 offset:{3*528}
    s_mov_b64 exec, -1
    ds_read_b32 v28, v83""")
    QP = "row_mask:0xf bank_mask:0xf"
    k(f"""v_lshlrev_b32 v144, 16, v144
    v_lshlrev_b32 v145, 16, v145
    v_mul_f32 v144, {f2h(0.25)}, v144
    v_mul_f32 v145, {f2h(0.25)}, v145
    v_add_f32_dpp v146, v144, v144 quad_perm:[1,0,3,2] {QP}
    v_subrev_f32_dpp v147, v145, v145 quad_perm:[1,0,3,2] {QP}
    v_add_f32_dpp v148, v146, v146 quad_perm:[2,3,0,1] {QP}
    v_add_f32_dpp v149, v147, v147 quad_perm:[2,3,0,1] {QP}
    v_subrev_f32_dpp v150, v146, v146 quad_perm:[2,3,0,1] {QP}
    v_subrev_f32_dpp v151, v147, v147 quad_perm:[2,3,0,1] {QP}
    v_cvt_pk_bf16_f32 v148, v148, v149
    v_cvt_pk_bf16_f32 v149, v150, v151
    v_and_b32 v6, 0xe3, v1
    v_min_u32 v6, 1, v6
    v_lshlrev_b32 v6, 30, v6
    v_lshl_add_u32 v6, v0, 1, v6
    s_lshl_b32 s64, s22, 6
    s_add_u32 s64, s64, {WS_WB}""")
    k("buffer_store_dwordx2 v[148:149], v6, s[28:31], s64 offen sc1", tag="wt")
    for h in range(2):
        for p in range(2):
            for part in range(2):
                d = 96 + 8*p + 4*part
                k(f"{MF} {R(d)}, {R(32+16*p+8*h+4*part)}, {R(64+8*p+4*h)}, {R(d) if h else 0}")
    for p in range(2):
        d = 96 + 8*p
        for q in range(4): k(f"v_pk_mul_f32 {R(d+2*q,2)}, {R(d+2*q,2)}, v[28:29] op_sel_hi:[1,0]")
        for r in range(4):
            k(f"v_cvt_pk_bf16_f32 v{112+8*p+2*r}, v{d+r}, v{d+4+r}")
            k(f"buffer_store_dwordx2 {R(112+8*p+2*r,2)}, v{204+r}, s[28:31], s{66+p} offen sc1")
    stamp()
    if not opt.get("w1b_late"): k.extend(touch("w1b", 155))
    k(f"""v_cmp_lt_u32 vcc, 25, v0
    v_mov_b32 v5, {2752 - 26*16}
    v_cndmask_b32 v5, 0, v5, vcc
    v_cmp_lt_u32 vcc, 51, v0
    v_mov_b32 v6, {16*2752 - 52*16}
    v_cndmask_b32 v5, v5, v6, vcc
    v_add_u32 v7, v5, v12
    v_subrev_u32 v5, 24, v0
    v_cmp_gt_u32 vcc, 2, v5
    v_mov_b32 v6, {OOB}
    v_cndmask_b32 v7, v7, v6, vcc
    v_subrev_u32 v5, 50, v0
    v_cmp_gt_u32 vcc, 2, v5
    v_cndmask_b32 v7, v7, v6, vcc""")
    def w1dma(batch):
        with k.capture() as L:
            k(f"""s_lshl_b32 s68, s3, 1
            s_add_u32 s68, s68, {8*batch}
            s_mul_i32 s68, s68, 2752
            s_mul_i32 s69, s24, 384
            s_add_u32 s68, s68, s69
            s_mul_i32 s69, s3, {2*KP}
            s_add_u32 s69, s69, {LG}""")
            for t in range(2):
                for n in range(16):
                    k(f"s_add_u32 m0, s69, {t*KP + n*832}"); k.ins[-1].glue = True
                    k(f"s_nop 0"); k.ins[-1].glue = True
                    k(f"buffer_load_dwordx4 v7, s[44:47], s68 offen lds", tag=f"w1b{batch}"); k.ins[-1].glue = True
                    k(f"s_add_u32 s68, s68, {16*2752}")
        return L[:7] if f"dma{batch}" in opt.get("skip", []) else L
    def w1tr(batch, a0):
        k(f"""v_bfe_u32 v{a0}, v0, 2, 2
        v_lshl_add_u32 v{a0}, v9, 3, v{a0}
        v_mul_u32_u24 v{a0}, 416, v{a0}
        v_and_b32 v{a0+1}, 3, v0
        v_lshl_add_u32 v{a0}, v{a0+1}, 3, v{a0}
        s_lshr_b32 s68, s3, 1
        s_mul_i32 s68, s68, 192
        s_and_b32 s69, s3, 1
        s_lshl_b32 s69, s69, 5
        s_add_u32 s68, s68, {LG}
        s_add_u32 s69, s69, s68
        s_add_u32 s69, s69, 64
        v_add_u32 v{a0+1}, s69, v{a0}
        s_and_b32 s69, s3, 1
        s_lshl_b32 s69, s69, 7
        s_add_u32 s69, s69, s68
        v_add_u32 v{a0}, s69, v{a0}
        v_add_u32 v{a0+2}, {4*KP}, v{a0}
        v_add_u32 v{a0+3}, {4*KP}, v{a0+1}""")
        for kl in range(8):
            kap = 8*batch + kl
            for tau in range(3):
                a = a0 + 2*(kl >> 2) + (1 if tau == 2 else 0)
                off = (kl & 3)*KP + (32 if tau == 1 else 0)
                d = (tau*16 + kap)*4
                k(f"ds_read_b64_tr_b16 {R(d,2,'a')}, v{a} offset:{off}\nds_read_b64_tr_b16 {R(d+2,2,'a')}, v{a} offset:{off+4*416}")
    with k.capture() as cB:
        k(f"""v_cvt_f32_u32 v156, v8
        v_lshlrev_b32 v157, 2, v9
        v_cvt_f32_u32 v157, v157
        s_lshl_b32 s56, s3, 1
        v_cvt_f32_u32 v158, s56""")
        def mats(base, inv, lane_is_k, N1, N):
            for e in range(2):
                if lane_is_k:
                    k(f"""v_mul_f32 v159, {f2h(1/N)}, v156
                    v_add_f32 v160, {f2h(float(e))}, v158
                    v_fmac_f32 v160, {f2h(float(N1))}, v157
                    v_mul_f32 v160, v160, v159
                    v_mul_f32 v159, {f2h(float(N1))}, v159""")
                else:
                    k(f"""v_add_f32 v159, {f2h(float(e))}, v158
                    v_fmac_f32 v159, {f2h(float(N1))}, v156
                    v_mul_f32 v159, {f2h(1/N)}, v159
                    v_mul_f32 v160, v157, v159""")
                k("v_add_f32 v162, v160, v159\nv_add_f32 v164, v162, v159\nv_add_f32 v166, v164, v159")
                for r in range(4): k(f"v_sin_f32 v{161+2*r}, v{160+2*r}\nv_cos_f32 v{160+2*r}, v{160+2*r}")
                for r in range(4):
                    d, co, si = base + 8*e + r, 160 + 2*r, 161 + 2*r
                    if inv: k(f"v_cvt_pk_bf16_f32 v{d}, v{co}, -v{si}\nv_cvt_pk_bf16_f32 v{d+4}, v{si}, v{co}")
                    else: k(f"v_cvt_pk_bf16_f32 v{d}, v{co}, v{si}\nv_cvt_pk_bf16_f32 v{d+4}, -v{si}, v{co}")
        mats(56, False, True, 128, 2048)
        k(f"""v_mul_f32 v159, {f2h(1/256)}, v156
        v_mul_f32 v120, v157, v159
        v_add_f32 v121, v120, v159
        v_add_f32 v122, v121, v159
        v_add_f32 v123, v122, v159""")
        for r in range(4): k(f"v_sin_f32 v{124+r}, v{120+r}\nv_cos_f32 v{120+r}, v{120+r}")
        mats(72, False, True, 8, 128)
        k(f"""v_lshrrev_b32 v159, 1, v8
        v_cvt_f32_u32 v159, v159
        v_mul_f32 v159, {f2h(1/8)}, v159
        v_and_b32 v160, 1, v8
        v_cvt_f32_u32 v160, v160
        v_mul_f32 v160, {f2h(0.25)}, v160
        v_mul_f32 v165, 0.5, v157""")
        for e in range(2):
            if e: k("v_add_f32 v165, 1.0, v165")
            k(f"""v_fma_f32 v161, v159, v165, v160
            v_fma_f32 v163, -v159, v165, v160
            v_sin_f32 v162, v161
            v_cos_f32 v161, v161
            v_sin_f32 v164, v163
            v_cos_f32 v163, v163
            v_cvt_pk_bf16_f32 v{128+e}, v161, v162
            v_mul_f32 v163, {f2h(2.0**-19)}, v163
            v_mul_f32 v164, {f2h(2.0**-19)}, v164
            v_cvt_pk_bf16_f32 v{130+e}, v163, v164""")
        mats(88, True, False, 8, 128)
        mats(104, True, False, 128, 2048)
        k(f"""v_lshlrev_b32 v168, 10, v9
        v_lshl_add_u32 v168, v8, 4, v168
        s_lshl_b32 s56, s3, 8
        v_add_u32 v168, s56, v168
        s_lshl_b32 s56, s3, 10
        v_add_u32 v169, s56, v12
        v_lshlrev_b32 v170, 18, v9
        v_lshl_add_u32 v170, v8, 4, v170
        v_lshrrev_b32 v171, 1, v8
        v_lshlrev_b32 v171, 7, v171
        v_lshl_add_u32 v171, v9, 10, v171
        v_and_b32 v172, 1, v8
        v_lshl_add_u32 v171, v172, 5, v171
        v_lshlrev_b32 v172, 7, v1
        v_lshlrev_b32 v173, 6, v1
        v_lshlrev_b32 v175, 6, v1
        s_lshl_b32 s56, s23, 18
        s_lshr_b32 s57, s24, 1
        s_lshl_b32 s57, s57, 15
        s_add_u32 s56, s56, s57
        s_and_b32 s57, s24, 1
        s_lshl_b32 s57, s57, 6
        s_add_u32 s56, s56, s57
        s_lshl_b32 s57, s3, 13
        s_add_u32 s56, s56, s57
        s_add_u32 s56, s56, {WS_X}
        s_add_u32 s57, s56, 4096
        s_and_b32 s60, s27, 1
        s_lshl_b32 s60, s60, 3
        s_add_u32 s60, s60, s24
        s_sub_u32 s58, 32, s60
        s_cmp_eq_u32 s60, 0
        s_cselect_b32 s58, 16, s58
        s_cmp_ge_u32 s27, 2
        s_cselect_b32 s58, s58, s60
        s_lshl_b32 s59, s25, 5
        s_add_u32 s59, s59, s58
        s_and_b32 s58, s59, 3
        s_lshl_b32 s58, s58, 4
        s_bfe_u32 s61, s59, 0x10002
        s_lshl_b32 s61, s61, 15
        s_add_u32 s58, s58, s61
        s_lshr_b32 s59, s59, 3
        s_lshl_b32 s59, s59, 18
        s_add_u32 s58, s58, s59
        s_add_u32 s58, s58, {WS_X + 196608}
        s_lshr_b32 s59, s25, 1
        s_lshl_b32 s59, s59, 14
        s_add_u32 s59, s59, {WS_WF}
        s_lshl_b32 s60, s60, 4
        s_sub_u32 s61, 15, s25
        s_cmp_ge_u32 s27, 2
        s_cselect_b32 s61, s61, s25
        s_add_u32 s60, s60, s61
        s_lshl_b32 s60, s60, 8
        s_lshl_b32 s61, s3, 21
        s_add_u32 s60, s60, s61
        s_add_u32 s60, s60, {WS_X + 131072}
        s_add_u32 s61, s60, {4*GS}""")
    for x_ in cB:
        if x_.op.startswith("s_cmp"): x_.glue = True
    nb = opt.get("cB_split", 150)
    d0 = w1dma(0)
    k.extend(interleave(cB[:nb], d0[:7+4*opt.get('d0_split', 14)], every=opt.get("x1_every", 9)))
    k(f"""v_cmp_gt_u32 vcc, 16, v0
    v_mov_b32 v5, {OOB}
    v_lshlrev_b32 v4, 2, v0
    v_mov_b32 v6, s72
    v_cndmask_b32 v5, v5, v4, vcc
    s_lshl_b32 s64, s3, 14
    s_lshl_b32 s66, s22, 6
    s_add_u32 s64, s64, s66
    s_add_u32 s64, s64, {WS_WF}""")
    if opt.get("st_wt"): stamp()
    k.wait_tag("wt")
    if opt.get("st_wt"): stamp()
    k("buffer_store_dword v6, v5, s[28:31], s64 offen sc1")
    if opt.get("w1b_late"): k.extend(touch("w1b", 155))
    k.extend(interleave(cB[nb:], d0[7+4*opt.get('d0_split', 14):], every=opt.get("x1_every", 9)))
    srd(k, 32, 20, 16384, WS_WB)
    k("s_cmp_eq_u32 s22, 0\ns_cselect_b32 s34, 16384, 0")
    stamp()
    zl = "\n".join(f"buffer_load_dwordx4 {R(176+8*e+4*q)}, v171, s[28:31], s{56+e} offen offset:{16*q} sc1" for e in range(2) for q in range(2))
    wfl = "buffer_load_dword v174, v173, s[28:31], s59 offen sc1"
    k(wfl)
    poll(wfl, "v_cmp_ne_u32 vcc, s72, v174", "pwf")
    if opt.get("st_wt"): stamp()
    k(zl)
    k("""buffer_load_dwordx4 v[24:27], v172, s[28:31], s58 offen sc1
    buffer_load_dwordx4 v[28:31], v172, s[28:31], s58 offen offset:64 sc1""")
    for q in range(4): k(f"buffer_load_dwordx4 {R(192+4*q)}, v175, s[32:35], 0 offen offset:{16*q} sc1")
    k.extend(touch("w2a", 33))
    poll(zl, tagcheck(range(177, 192, 2)), "pz", "s_cbranch_scc0")
    stamp()
    for e in range(2):
        for r in range(4): k(f"v_mov_b32 v{16+4*e+r}, v{176+8*e+2*r}")
    def twiddle(sign):
        for e in range(2):
            re, im = 132 + 8*e, 136 + 8*e
            for q in range(2):
                a, b = 156 + 4*e + 2*q, 148 + 4*e + 2*q
                n1_, n2_ = ("neg_lo:[0,1,0] neg_hi:[0,1,0]", "") if sign > 0 else ("", "neg_lo:[0,1,0] neg_hi:[0,1,0]")
                k(f"""v_pk_mul_f32 {R(a,2)}, {R(re+2*q,2)}, {R(120+2*q,2)}
                v_pk_mul_f32 {R(b,2)}, {R(im+2*q,2)}, {R(120+2*q,2)}
                v_pk_fma_f32 {R(a,2)}, {R(im+2*q,2)}, {R(124+2*q,2)}, {R(a,2)} {n1_}
                v_pk_fma_f32 {R(b,2)}, {R(re+2*q,2)}, {R(124+2*q,2)}, {R(b,2)} {n2_}""")
            for r in range(4): k(f"v_cvt_pk_bf16_f32 v{16+4*e+r}, v{156+4*e+r}, v{148+4*e+r}")
    def stage(cbase, data_is_A):
        for e in range(2):
            for part in range(2):
                c_ = R(cbase + 8*e + 4*part); d_ = R(16 + 4*e)
                k(f"{MF} {R(132+8*e+4*part)}, {d_ if data_is_A else c_}, {c_ if data_is_A else d_}, 0")
    stage(56, True)
    twiddle(-1)
    stage(72, False)
    for e in range(2):
        for r in range(4): k(f"v_cvt_pk_bf16_f32 v{16+2*r+e}, v{132+8*e+r}, v{136+8*e+r}")
    k(f"ds_write_b128 v168, v[16:19] offset:{LE1}\nds_write_b128 v168, v[20:23] offset:{LE1+4096}")
    k.wait_lds(); k("s_barrier")
    k(f"ds_read_b128 v[16:19], v169 offset:{LE1}\nds_read_b128 v[20:23], v169 offset:{LE1+4096}")
    for n in range(8):
        for p_ in range(2):
            k(f"v_lshlrev_b32 v{40+2*n+p_}, 16, v{24+4*p_+(n>>1)}" if n % 2 == 0 else f"v_and_b32 v{40+2*n+p_}, 0xffff0000, v{24+4*p_+(n>>1)}")
    for r in range(4): k(f"{MF16} {R(132+4*r)}, v[128:129], {R(16+2*r,2)}, 0")
    for n in range(8): k(f"v_pk_mul_f32 {R(148+2*n,2)}, {R(132+2*n,2)}, {R(40+2*n,2)} op_sel:[0,0] op_sel_hi:[1,0]")
    for n in range(8): k(f"v_pk_fma_f32 {R(148+2*n,2)}, {R(132+2*n,2)}, {R(40+2*n,2)}, {R(148+2*n,2)} op_sel:[1,1,0] op_sel_hi:[0,1,1] neg_lo:[0,1,0]")
    k("s_cmp_lg_u32 s22, 0")
    with k.skippable("s_cbranch_scc1"):
        k(f"""s_lshl_b32 s64, s3, 6
        v_lshl_add_u32 v174, v9, 9, v8
        v_add_u32 v174, s64, v174
        v_lshlrev_b32 v175, 3, v174""")
        for n in range(8): k(f"ds_write_b64 v175, {R(132+2*n,2)} offset:{LSP + 8*(16*(n>>1) + 256*(n&1))}")
        for n in range(8): k(f"v_lshlrev_b32 v{40+2*n}, 16, v{192+2*n}\nv_and_b32 v{41+2*n}, 0xffff0000, v{192+2*n}")
        for n in range(8): k(f"v_pk_mul_f32 {R(148+2*n,2)}, {R(132+2*n,2)}, {R(40+2*n,2)} op_sel:[0,0] op_sel_hi:[1,0]")
        for n in range(8): k(f"v_pk_fma_f32 {R(148+2*n,2)}, {R(132+2*n,2)}, {R(40+2*n,2)}, {R(148+2*n,2)} op_sel:[1,1,0] op_sel_hi:[0,1,1] neg_lo:[0,1,0]")
        k.wait_lds(); k("s_barrier")
        for n in range(8):
            k(f"""v_sub_u32 v175, {2048 - (16*(n>>1) + 256*(n&1))}, v174
            v_and_b32 v175, 2047, v175
            v_lshlrev_b32 v175, 3, v175
            ds_read_b64 {R(132+2*n,2)}, v175 offset:{LSP}
            v_lshlrev_b32 v{40+2*n}, 16, v{193+2*n}
            v_and_b32 v{41+2*n}, 0xffff0000, v{193+2*n}""")
        for n in range(8):
            F = R(132+2*n, 2); W = R(40+2*n, 2); T = R(148+2*n, 2)
            k(f"""v_pk_fma_f32 {T}, {F}, {W}, {T} op_sel:[0,0,0] op_sel_hi:[1,0,1] neg_hi:[1,0,0]
            v_pk_fma_f32 {T}, {F}, {W}, {T} op_sel:[1,1,0] op_sel_hi:[0,1,1]""")
    for n in range(8): k(f"v_cvt_pk_bf16_f32 v{16+n}, v{148+2*n}, v{149+2*n}")
    for r in range(4): k(f"{MF16} {R(132+4*r)}, v[130:131], {R(16+2*r,2)}, 0")
    for r in range(4):
        for e in range(2): k(f"v_cvt_pk_bf16_f32 v{24+4*e+r}, v{132+4*r+2*e}, v{133+4*r+2*e}")
    k(f"ds_write_b128 v168, v[24:27] offset:{LE0}\nds_write_b128 v168, v[28:31] offset:{LE0+4096}")
    k.wait_lds(); k("s_barrier")
    k(f"ds_read_b128 v[16:19], v169 offset:{LE0}\nds_read_b128 v[20:23], v169 offset:{LE0+4096}")
    stage(88, True)
    twiddle(+1)
    stage(104, False)
    for e in range(2):
        for r in range(4): k(f"v_cvt_pk_bf16_f32 v{224+4*e+r}, v{132+8*e+r}, v{136+8*e+r}")
        k(f"buffer_store_dwordx4 {R(224+4*e)}, v170, s[28:31], s{60+e} offen sc1")
    stamp()
    k.extend(touch("w2b", 24))
    w1tr(0, 16)
    k(f"""v_mul_u32_u24 v20, {XP}, v10
    v_lshl_add_u32 v20, v9, 7, v20
    v_lshl_add_u32 v20, v11, 2, v20
    s_lshl_b32 s56, s3, 3
    v_add_u32 v20, s56, v20""")
    for t in range(2):
        for r in range(4): k(f"ds_read_b32 v{208+4*t+r}, v20 offset:{512*t+32*r}")
    k.wait_lds(); k("s_barrier")
    with k.capture() as cC:
        k(f"""v_cvt_f32_u32 v248, v8
        v_lshlrev_b32 v249, 2, v9
        v_cvt_f32_u32 v249, v249
        v_mul_f32 v250, {f2h(1/16)}, v248
        v_cmp_lt_u32 vcc, 1, v9
        v_mov_b32 v251, 0x80000000
        v_mul_f32 v240, v249, v250
        v_cndmask_b32 v251, 0, v251, vcc
        v_add_f32 v242, v240, v250
        v_add_f32 v244, v242, v250
        v_add_f32 v246, v244, v250""")
        for r in range(4): k(f"v_sin_f32 v{241+2*r}, v{240+2*r}\nv_cos_f32 v{240+2*r}, v{240+2*r}")
        for r in range(4):
            k(f"""v_cvt_pk_bf16_f32 v{144+r}, v{240+2*r}, -v{241+2*r}
            v_cvt_pk_bf16_f32 v{148+r}, v{241+2*r}, v{240+2*r}
            v_xor_b32 v{144+r}, v251, v{144+r}
            v_xor_b32 v{148+r}, v251, v{148+r}""")
        k(f"""s_lshl_b32 s56, s3, 2
        v_cvt_f32_u32 v250, s56
        v_fmac_f32 v250, {f2h(16.0)}, v248
        v_mul_f32 v250, {f2h(1/512)}, v250
        v_mul_f32 v254, 0.5, v248
        v_mov_b32 v255, {f2h(0.25)}
        v_cmp_eq_u32 vcc, 0, v9
        v_cndmask_b32 v254, v255, v254, vcc""")
        for n in range(4):
            for t in range(2):
                d = 160 + 8*n + 4*t
                k(f"""v_add_f32 v251, {f2h((256*t + n)/512)}, v250
                v_mul_f32 v240, v249, v251
                v_add_f32 v241, v240, v254
                v_add_f32 v242, v240, v251
                v_cos_f32 v240, v240
                v_cos_f32 v241, v241
                v_add_f32 v244, v242, v251
                v_sin_f32 v243, v242
                v_cos_f32 v242, v242
                v_add_f32 v246, v244, v251
                v_sin_f32 v245, v244
                v_cos_f32 v244, v244
                v_cvt_pk_bf16_f32 v{d}, v240, v241
                v_sin_f32 v247, v246
                v_cos_f32 v246, v246
                v_cvt_pk_bf16_f32 v{d+1}, v242, -v243
                v_cvt_pk_bf16_f32 v{d+2}, v244, -v245
                v_cvt_pk_bf16_f32 v{d+3}, v246, -v247""")
        for r in range(128, 144): k(f"v_mov_b32 v{r}, 0")
        for t in range(2):
            for r in range(4):
                k(f"v_lshlrev_b32 v{192+4*t+r}, 16, v{208+4*t+r}\nv_and_b32 v{200+4*t+r}, 0xffff0000, v{208+4*t+r}")
        k(f"""v_lshlrev_b32 v16, 13, v11
        v_lshl_add_u32 v16, v9, 10, v16
        v_lshl_add_u32 v16, v10, 2, v16
        s_lshl_b32 s62, s23, 18
        s_add_u32 s62, s62, {WS_X}
        s_lshl_b32 s56, s3, 14
        s_add_u32 s56, s56, s62
        s_lshl_b32 s57, s24, 5
        s_add_u32 s56, s56, s57
        s_add_u32 s56, s56, 131072
        s_add_u32 s57, s56, 4096
        s_add_u32 s62, s62, {ALT}
        v_lshlrev_b32 v18, 4, v10
        v_lshl_add_u32 v17, v9, 11, v18
        v_lshl_add_u32 v17, v11, 3, v17
        s_lshl_b32 s58, s3, 7
        s_add_u32 s58, s58, {LE1}
        v_add_u32 v17, s58, v17
        v_lshl_add_u32 v19, v9, 8, v18
        v_lshl_add_u32 v19, v11, 11, v19
        v_lshl_add_u32 v18, v9, 7, v18
        s_lshl_b32 s58, s3, 11
        s_add_u32 s58, s58, {LE1}
        v_add_u32 v18, s58, v18
        v_lshlrev_b32 v21, 5, v10
        v_add_u32 v21, {LST}, v21
        v_lshrrev_b32 v20, 5, v0
        v_lshl_add_u32 v20, v20, 4, v21
        s_lshl_b32 s58, s3, 2
        v_add_u32 v20, s58, v20
        s_lshr_b32 s58, s24, 1
        s_lshl_b32 s58, s58, 14
        s_add_u32 s58, s58, s62
        s_lshl_b32 s59, s3, 12
        s_add_u32 s58, s58, s59
        s_and_b32 s59, s24, 1
        s_lshl_b32 s59, s59, 7
        s_add_u32 s58, s58, s59
        v_lshlrev_b32 v22, 2, v10
        v_lshlrev_b32 v23, 3, v0
        v_cmp_gt_u32 vcc, 8, v1
        v_mov_b32 v255, {OOB}
        v_cndmask_b32 v23, v255, v23, vcc
        s_lshl_b32 s59, s24, 6
        s_add_u32 s59, s59, s65
        v_mov_b32 v255, 0x3f803f80""")
    k.extend(interleave(cC, w1dma(1), every=opt.get("x2_every", 9)))
    k("s_cmp_lg_u32 s3, 0")
    with k.skippable("s_cbranch_scc1"):
        k(f"""v_cmp_lt_u32 vcc, 1, v9
        v_mul_f32 v241, {f2h(1/512)}, v248
        v_mul_f32 v240, {f2h(32.0)}, v249
        v_sub_f32 v246, {f2h(496.0)}, v240
        v_mov_b32 v245, {f2h(32.0)}
        v_cndmask_b32 v240, v240, v246, vcc
        v_cndmask_b32 v245, v245, -v245, vcc""")
        for r in range(4):
            k(f"""v_mul_f32 v242, v240, v241
            v_add_f32 v240, v240, v245
            v_sin_f32 v243, v242
            v_cos_f32 v242, v242
            v_cvt_pk_bf16_f32 v244, v242, -v243
            v_cndmask_b32 v{152+r}, v244, 0, vcc
            v_cndmask_b32 v{156+r}, 0, v244, vcc""")
        k(f"""v_and_b32 v242, 1, v8
        v_lshlrev_b32 v242, 31, v242
        v_or_b32 v242, 0x3f003f00, v242
        v_cmp_eq_u32 vcc, 0, v9
        v_cndmask_b32 v152, v152, v242, vcc""")
    idl = "buffer_load_dword v254, v22, s[28:31], s65 offen sc1"
    zl2 = "\n".join(f"buffer_load_dword v{216+4*p+r}, v16, s[28:31], s{56+p} offen offset:{256*r} sc1" for p in range(2) for r in range(4))
    stamp()
    k(idl); k(zl2)
    poll(idl, "v_subrev_u32 v253, s72, v254\nv_cmp_lt_u32 vcc, 15, v253", "pid")
    k("v_cmp_ne_u32 vcc, s71, v254\ns_cmp_eq_u64 vcc, 0\ns_cselect_b32 s70, 1, 0")
    if opt.get("force_slow"): k("s_mov_b32 s70, 0")
    poll(zl2, """v_max3_u32 v240, v216, v217, v218
    v_max3_u32 v241, v219, v220, v221
    v_max3_u32 v240, v240, v222, v223
    v_max_u32 v240, v240, v241
    v_cmp_eq_u32 vcc, -1, v240""", "pz2")
    stamp()
    k(f"{MF} {R(224)}, {R(144)}, {R(216)}, 0\n{MF} {R(228)}, {R(148)}, {R(216)}, 0")
    k(f"{MF} {R(232)}, {R(144)}, {R(220)}, 0\n{MF} {R(236)}, {R(148)}, {R(220)}, 0")
    k("s_cmp_lg_u32 s3, 0")
    with k.skippable("s_cbranch_scc1"):
        k(f"{MF} {R(240)}, {R(152)}, {R(216)}, 0\n{MF} {R(244)}, {R(156)}, {R(216)}, 0")
        for r in range(8): k(f"v_cndmask_b32 v{224+r}, v{224+r}, v{240+r}, s[4:5]")
    for r in range(4):
        for p in range(2): k(f"v_cvt_pk_bf16_f32 v{240+2*r+p}, v{224+8*p+r}, v{228+8*p+r}")
        k(f"ds_write_b64 v17, {R(240+2*r,2)} offset:{512*r}")
    k.wait_lds(); k("s_barrier")
    k(f"""s_mov_b64 exec, s[4:5]
    ds_read_b128 {R(128)}, v18
    ds_read_b128 {R(132)}, v18 offset:512
    s_mov_b64 exec, s[6:7]
    ds_read_b128 {R(136)}, v18 offset:1024
    ds_read_b128 {R(140)}, v18 offset:1536
    s_mov_b64 exec, -1""")
    for hv in range(2):
        for e in range(2):
            for t in range(2):
                n = 2*hv + e
                k(f"{MF} {R(192+8*e+4*t)}, {R(160+8*n+4*t)}, {R(128+4*n)}, {R(192+8*e+4*t)}")
    k("v_mov_b32 v248, 0\nv_mov_b32 v249, 0\nv_mov_b32 v250, 0\nv_mov_b32 v251, 0")
    for t in range(2):
        for r in range(4): k(f"v_cvt_pk_bf16_f32 v{240+4*t+r}, v{192+4*t+r}, v{200+4*t+r}")
    for n in range(4):
        k(f"""v_dot2c_f32_bf16 v248, v{240+n}, v255
        v_dot2c_f32_bf16 v249, v{240+n}, v{240+n}
        v_dot2c_f32_bf16 v250, v{244+n}, v255
        v_dot2c_f32_bf16 v251, v{244+n}, v{244+n}""")
    k("""v_add_f32 v248, v248, v250
    v_add_f32 v249, v249, v251
    v_permlane32_swap_b32 v248, v249
    v_add_f32 v248, v248, v249
    v_mov_b32 v249, v248
    v_permlane16_swap_b32 v248, v249
    v_add_f32 v248, v248, v249
    v_add_f32_dpp v248, v248, v248 row_ror:8 row_mask:0xf bank_mask:0xf
    ds_write_b32 v20, v248""")
    k.wait_lds(); k("s_barrier")
    k(f"""ds_read_b128 {R(224)}, v21
    ds_read_b128 {R(228)}, v21 offset:16
    v_add_f32 v224, v224, v225
    v_add_f32 v226, v226, v227
    v_add_f32 v228, v228, v229
    v_add_f32 v230, v230, v231
    v_add_f32 v224, v224, v226
    v_add_f32 v228, v228, v230
    v_mul_f32 v224, {f2h(1/512)}, v224
    v_mul_f32 v228, {f2h(1/512)}, v228
    v_fma_f32 v228, -v224, v224, v228
    v_max_f32 v228, 0, v228
    v_add_f32 v225, {f2h(1e-5)}, v228
    v_rsq_f32 v228, v225
    v_mul_f32 v229, -v224, v228""")
    for n in range(8): k(f"v_pk_fma_f32 {R(192+2*n,2)}, {R(192+2*n,2)}, v[228:229], v[228:229] op_sel:[0,0,1] op_sel_hi:[1,0,1]")
    for t in range(2):
        for r in range(4): k(f"v_cvt_pk_bf16_f32 v{216+4*t+r}, v{192+4*t+r}, v{200+4*t+r}")
    k("v_mul_f32 v225, v225, v228")
    k.dual("s70", [f"buffer_store_dwordx4 {R(216+4*t)}, v19, s[28:31], s58 offen offset:{1024*t}" for t in range(2)]
           + ["buffer_store_dwordx2 v[224:225], v23, s[28:31], s59 offen offset:768"], "sc1", tag="x3")
    stamp()
    srd(k, 36, 14, 2752)
    srd(k, 40, 18, 1024)
    k(f"""v_cmp_eq_u32 vcc, 0, v0
    v_mov_b32 v3, {OOB}
    v_mov_b32 v4, s72
    v_cndmask_b32 v3, v3, 0, vcc
    s_lshl_b32 s12, s24, 4
    s_lshl_b32 s13, s3, 2
    s_add_u32 s12, s12, s13
    s_add_u32 s12, s12, s65
    v_and_b32 v5, 31, v0
    v_lshlrev_b32 v5, 2, v5""")
    w1tr(1, 24)
    k.wait_tag("x3")
    k.dual("s70", ["buffer_store_dword v4, v3, s[28:31], s12 offen offset:128"], "sc1")
    f3 = "buffer_load_dword v6, v5, s[28:31], s65 offen offset:128 sc1"
    k(f3)
    k(f"""s_lshr_b32 s14, s3, 1
    s_mul_i32 s14, s14, 3
    s_mul_i32 s15, s24, 6
    s_add_u32 s14, s14, s15
    s_and_b32 s15, s3, 1
    s_lshl_b32 s16, s15, 1
    s_add_u32 s16, s16, s14
    s_add_u32 s14, s14, 1
    v_lshlrev_b32 v7, 3, v9
    s_lshl_b32 s17, s16, 6
    s_lshl_b32 s18, s14, 6
    s_lshl_b32 s19, s15, 5
    s_add_u32 s18, s18, s19
    buffer_load_dwordx2 v[80:81], v7, s[36:39], s17 offen
    buffer_load_dwordx2 v[82:83], v7, s[36:39], s17 offen offset:32
    buffer_load_dwordx2 v[84:85], v7, s[36:39], s18 offen
    v_lshlrev_b32 v7, 3, v8
    s_lshl_b32 s17, s24, 7
    buffer_load_dwordx2 v[86:87], v7, s[40:43], s17 offen
    s_add_u32 s19, s62, 65536
    s_lshl_b32 s56, s16, 10
    s_add_u32 s56, s56, s19
    s_cmp_ge_u32 s16, 43
    s_cselect_b32 s56, {OOB}, s56
    s_lshl_b32 s57, s14, 10
    s_add_u32 s57, s57, s19
    s_lshl_b32 s15, s15, 3
    s_add_u32 s57, s57, s15
    s_cmp_ge_u32 s14, 43
    s_cselect_b32 s57, {OOB}, s57
    s_mul_i32 s14, s3, 11
    s_lshl_b32 s15, s14, 10
    s_add_u32 s58, s19, s15
    s_cmp_eq_u32 s3, 3
    s_cselect_b32 s59, {OOB}, s58
    s_lshl_b32 s60, s14, 15
    s_add_u32 s60, s60, s17
    s_lshl_b32 s61, s3, 14
    s_add_u32 s15, s61, {LW2 - 32768}
    s_cmp_ge_u32 s3, 2
    s_cselect_b32 s61, s15, s61
    v_add_u32 v13, 4096, v12
    v_add_u32 v14, 8192, v12""")
    k(f"""s_lshl_b32 s14, s24, 4
    s_sub_u32 s14, s73, s14
    s_and_b32 s15, s3, 1
    s_lshl_b32 s15, s15, 3
    s_add_u32 s14, s14, s15
    s_lshr_b32 s15, s3, 1
    s_lshl_b32 s15, s15, 4
    s_add_u32 s14, s14, s15
    s_lshl_b32 s14, s14, 10
    s_add_u32 s63, s14, s17
    v_lshl_add_u32 v2, v9, 17, v7
    s_lshl_b32 s14, s3, 5
    s_add_u32 s64, s14, s65
    v_lshlrev_b32 v1, 3, v9""")
    k(f"""v_and_b32 v15, 3, v0
    v_lshlrev_b32 v15, 12, v15
    v_bfe_u32 v7, v0, 2, 2
    v_lshl_add_u32 v15, v7, 2, v15
    v_lshl_add_u32 v15, v9, 4, v15
    s_lshr_b32 s14, s24, 2
    s_lshl_b32 s14, s14, 10
    s_and_b32 s15, s24, 3
    s_lshl_b32 s15, s15, 8
    s_add_u32 s14, s14, s15
    s_lshl_b32 s15, s3, 6
    s_add_u32 s14, s14, s15
    s_add_u32 s14, s14, {LG}
    v_add_u32 v15, s14, v15""")
    k(f"""v_mul_u32_u24 v11, 1312, v7
    v_and_b32 v7, 3, v0
    v_mul_u32_u24 v7, 320, v7
    v_add_u32 v11, v11, v7
    v_lshl_add_u32 v11, v9, 4, v11
    s_lshl_b32 s14, s3, 6
    v_add_u32 v11, s14, v11
    v_mul_u32_u24 v10, 320, v9
    v_lshl_add_u32 v10, v8, 4, v10
    s_mul_i32 s14, s3, {RP}
    v_add_u32 v10, s14, v10""")
    k(f"""v_lshrrev_b32 v7, 3, v0
    v_lshrrev_b32 v68, 2, v7
    v_and_b32 v69, 3, v7
    v_lshl_add_u32 v68, v68, 4, v69
    v_lshlrev_b32 v68, 10, v68
    v_bfe_u32 v7, v7, 1, 1
    v_lshlrev_b32 v7, 5, v7
    v_and_b32 v69, 7, v0
    v_lshlrev_b32 v69, 4, v69
    v_xor_b32 v69, v69, v7
    v_add_u32 v68, v68, v69
    v_xor_b32 v69, 64, v68
    v_bfe_u32 v7, v0, 2, 2
    v_lshl_add_u32 v70, v9, 3, v7
    v_lshlrev_b32 v70, 7, v70
    v_lshrrev_b32 v7, 1, v7
    v_lshl_add_u32 v70, v7, 5, v70
    v_and_b32 v7, 1, v9
    v_lshl_add_u32 v70, v7, 6, v70
    v_and_b32 v7, 3, v0
    v_lshl_add_u32 v70, v7, 3, v70
    v_xor_b32 v71, 32, v70
    v_xor_b32 v72, 64, v70
    v_xor_b32 v73, 96, v70
    v_add_u32 v70, s61, v70
    v_add_u32 v71, s61, v71
    v_add_u32 v72, s61, v72
    v_add_u32 v73, s61, v73
    v_add_u32 v7, {LG}, v12
    s_lshl_b32 s13, s3, 12
    s_add_u32 s14, s13, s62
    s_add_u32 s15, s13, {LG}""")
    k.wait_lds(); k("s_barrier")
    poll(f3, "v_cmp_ne_u32 vcc, s72, v6", "pf3")
    stamp()
    for rt in range(4):
        k("s_mov_b32 m0, s15")
        for m in range(4): k(f"buffer_load_dwordx4 v12, s[28:31], s14 offen offset:{1024*m} sc1 lds", tag=f"dma{rt}")
        if rt < 3: k("s_add_u32 s14, s14, 16384\ns_add_u32 s15, s15, 16384")
    for rt in range(4): k(f"buffer_load_dwordx2 {R(136+2*rt,2)}, v1, s[28:31], s64 offen offset:{768+128*rt} sc1")
    for n in range(6): k(f"v_lshlrev_b32 v{16+2*n}, 16, v{80+n}\nv_and_b32 v{17+2*n}, 0xffff0000, v{80+n}")
    for n in range(2): k(f"v_lshlrev_b32 v{132+2*n}, 16, v{86+n}\nv_and_b32 v{133+2*n}, 0xffff0000, v{86+n}")
    def w2reg(s, sg, n=4, o=0): return R(192 + 16*s + 4*sg + o, n, "a") if s < 4 else R(144 + 16*(s-4) + 4*sg + o, n)
    def w2dma(s):
        with k.capture() as L:
            if s >= 4: k.mark("touch", regs=regs_of(w2reg(s-4, 3, 2, 2)))
            for m in range(4):
                k(f"s_add_u32 m0, s61, {(s&3)*4096 + m*1024}"); k.ins[-1].glue = True
                k("s_nop 0"); k.ins[-1].glue = True
                k(f"buffer_load_dwordx4 v{68+(m&1)}, s[48:51], s60 offen lds", tag=f"w2s{s}"); k.ins[-1].glue = True
                k(f"s_add_u32 s60, s60, {4096 if m < 3 else 32768 - 3*4096}")
        return L
    def w2tr(s):
        with k.capture() as L:
            k.wait_tag(f"w2s{s}")
            for sg in range(4):
                k(f"ds_read_b64_tr_b16 {w2reg(s,sg,2)}, v{70+sg} offset:{(s&3)*4096}\nds_read_b64_tr_b16 {w2reg(s,sg,2,2)}, v{70+sg} offset:{(s&3)*4096+512}")
        return L
    def hreg(rt, s): return R(88 + 4*s) if rt == 0 else R(44*(rt-1) + 4*s, 4, "a")
    def hload(rt, s): return f"buffer_load_dwordx4 {hreg(rt,s)}, v{12+(s>>2)}, s[28:31], s{59 if s == 10 else 58} offen offset:{(s&3)*1024} sc1"
    def hnext(): k(f"s_add_u32 s58, s58, {HT}\ns_add_u32 s59, s59, {HT}")
    def rd(rt, kap): return f"ds_read_b128 {R(28+4*(kap&3))}, v7 offset:{rt*16384+kap*1024}"
    def epi(rt):
        a = 44 + 12*(rt & 1)
        with k.capture() as L:
            for n in range(6):
                k(f"""v_max_f32 v74, 0, v{a+2*n}
                v_max_f32 v75, 0, v{a+2*n+1}
                v_mul_f32 v74, v74, v{a+2*n}
                v_mul_f32 v75, v75, v{a+2*n+1}
                v_cvt_pk_bf16_f32 v{80+n}, v74, v75""")
            k.dual("s70", ["buffer_store_dwordx4 v[80:83], v12, s[28:31], s56 offen", "buffer_store_dwordx2 v[84:85], v12, s[28:31], s57 offen"], "sc1", tag=f"h{rt}")
            if rt < 3: k(f"s_add_u32 s56, s56, {HT}\ns_add_u32 s57, s57, {HT}")
        return L
    def flag4(rt):
        k.wait_tag(f"h{rt}")
        k.dual("s70", [f"buffer_store_dword v4, v3, s[28:31], s12 offen offset:{256+128*rt}"], "sc1")
    def f4(rt): return f"buffer_load_dword v6, v5, s[28:31], s65 offen offset:{256+128*rt} sc1"
    FCHK = "v_cmp_ne_u32 vcc, s72, v6"
    for s_ in range(4): k.extend(w2dma(s_))
    k.wait_tag("dma0"); k("s_barrier")
    for kap in range(3): k(rd(0, kap))
    stamp()
    G1F, G1P = opt.get("g1_f", 7), opt.get("g1_p", 11)
    w2plan = {0: [0, 1, 2, 3], 1: [4, 5, 6], 2: [7, 8], 3: [9, 10]}
    for rt in range(4):
        a = 44 + 12*(rt & 1)
        with k.capture() as main:
            for kap in range(16):
                if kap == 12 and rt < 3: k.wait_tag(f"dma{rt+1}"); k("s_barrier")
                if rt >= 2 and kap == G1F: k(f4(rt-2))
                if rt >= 2 and kap == G1P:
                    poll(f4(rt-2), FCHK, f"pf4{rt-2}")
                    if rt == 3: hnext()
                for tau in range(3):
                    c_ = R(16+4*tau) if kap == 0 else R(a+4*tau)
                    k(f"{MF} {R(a+4*tau)}, {R((tau*16+kap)*4, f='a')}, {R(28+4*(kap&3))}, {c_}")
                if rt >= 2 and kap >= G1P:
                    for s in range(3*(kap-G1P), min(11, 3*(kap-G1P)+3)): k(hload(rt-2, s))
                if kap + 3 < 16: k(rd(rt, kap+3))
                elif rt < 3: k(rd(rt+1, kap+3-16))
        fill = epi(rt-1) if rt else []
        for s in w2plan[rt]:
            fill = fill + w2tr(s) + (w2dma(s+3) if 4 <= s + 3 <= 10 else [])
        k.extend(interleave(main, fill, every=1, per=2, start=2, only="mfma"))
        if rt: flag4(rt-1)
    stamp()
    def red_a(rt):
        a = 16 + 16*(rt & 1)
        for sg in range(4): k(f"ds_write_b128 v10, {R(a+4*sg)} offset:{LRD[rt&1] % 65536 + 1312*sg}" if LRD[rt&1] < 65536 else f"ds_write_b128 v76, {R(a+4*sg)} offset:{1312*sg}")
    def red_b(rt):
        k.wait_lds(); k("s_barrier")
        for src in range(4): k(f"ds_read_b128 {R(48+4*src)}, {'v11' if rt % 2 == 0 else 'v77'} offset:{RP*src}")
        r15 = "v15" if rt < 2 else "v78"
        k(f"ds_read_b32 v66, {r15} offset:{(rt&1)*16384}\nds_read_b32 v67, {r15} offset:{(rt&1)*16384+2048}")
        k(f"""v_add_f32 v48, v48, v52
        v_add_f32 v49, v49, v53
        v_add_f32 v50, v50, v54
        v_add_f32 v51, v51, v55
        v_add_f32 v56, v56, v60
        v_add_f32 v57, v57, v61
        v_add_f32 v58, v58, v62
        v_add_f32 v59, v59, v63
        v_lshlrev_b32 v52, 16, v66
        v_and_b32 v53, 0xffff0000, v66
        v_lshlrev_b32 v54, 16, v67
        v_and_b32 v55, 0xffff0000, v67""")
        for r in range(4): k(f"v_fma_f32 v{52+r}, v{52+r}, v{137+2*rt}, v{136+2*rt}")
        for r in range(4): k(f"v_add_f32 v{48+r}, v{48+r}, v{132+r}")
        for r in range(4): k(f"v_add_f32 v{52+r}, v{52+r}, v{56+r}")
        for r in range(4): k(f"v_add_f32 v{48+r}, v{48+r}, v{52+r}")
        k("v_cvt_pk_bf16_f32 v64, v48, v49\nv_cvt_pk_bf16_f32 v65, v50, v51")
        k(f"buffer_store_dwordx2 v[64:65], v2, s[52:55], s63 offen{' sc1' if opt.get('out_sc1', 1) else ''}")
        if rt < 3: k("s_add_u32 s63, s63, 32768")
    k(f"v_add_u32 v76, {LRD[1]}, v10\nv_add_u32 v77, {LRD[1]}, v11\nv_add_u32 v78, 32768, v15")
    for rt in range(4):
        a = 16 + 16*(rt & 1)
        with k.capture() as main:
            for s in range(11):
                if rt < 2 and s == opt.get("g2_f", 4): k(f4(rt+2))
                if rt < 2 and s == opt.get("g2_p", 7): poll(f4(rt+2), FCHK, f"pf4{rt+2}"); hnext()
                for sg in range(4):
                    k(f"{MF} {R(a+4*sg)}, {w2reg(s, sg)}, {hreg(rt, s)}, {'0' if s == 0 else R(a+4*sg)}")
                if rt < 2 and s >= opt.get("g2_p", 7):
                    n0 = (s - opt.get("g2_p", 7))*3
                    for s2 in range(n0, min(11, n0+3)): k(hload(rt+2, s2))
        with k.capture() as fill:
            if rt == 0: k.extend(epi(3))
            else: red_a(rt-1); red_b(rt-1)
        k.extend(interleave(main, fill, every=1, per=2, start=2, only="mfma"))
        if rt == 0: flag4(3)
    red_a(3); red_b(3)
    k(f"s_or_b32 s12, s22, s3\ns_cmp_eq_u32 s12, 0\ns_cselect_b32 s12, {WS_EP}, {OOB}")
    k("buffer_store_dword v4, v3, s[28:31], s12 offen")
    if diag:
        k.wait_vm_all(); stamp()
        k(f"""s_memrealtime s[14:15]
        s_waitcnt lgkmcnt(0)
        s_lshl_b32 s12, s2, 9
        s_lshl_b32 s13, s3, 7
        s_add_u32 s12, s12, s13
        s_add_u32 s12, s12, {WS_DBG}""")
        for n in range(nst[0]): k(f"v_mov_b32 v4, s{74+2*n}\nbuffer_store_dword v4, v3, s[28:31], s12 offen offset:{4*n}")
        k("v_mov_b32 v4, s100\nbuffer_store_dword v4, v3, s[28:31], s12 offen offset:120")
        k("v_mov_b32 v4, s14\nbuffer_store_dword v4, v3, s[28:31], s12 offen offset:124")
        k(f"""s_load_dwordx2 s[16:17], s[0:1], 72
        s_waitcnt lgkmcnt(0)
        s_mov_b32 s18, 64
        s_mov_b32 s19, 0x20000
        s_lshl_b32 s12, s2, 2
        s_add_u32 s12, s12, s3
        s_cmp_eq_u32 s12, {37*4}
        s_cselect_b32 s12, 0, {OOB}""")
        for n in range(1, nst[0]): k(f"s_sub_u32 s13, s{74+2*n}, s74\nv_mov_b32 v4, s13\nbuffer_store_dword v4, v3, s[16:19], s12 offen offset:{4*(n-1)}")
        k("s_sub_u32 s13, s14, s100\nv_mov_b32 v4, s13\nbuffer_store_dword v4, v3, s[16:19], s12 offen offset:60")
    k.label("L_end")
    k("s_endpgm")
    for name, loads, check, br in slow:
        k.mark("reset")
        k.label(f"{name}_retry")
        k("s_mov_b32 s69, 0")
        k.label(f"{name}_loop")
        k(f"s_add_u32 s69, s69, 1\ns_cmp_gt_u32 s69, 4000\ns_cbranch_scc1 {name}_out")
        k(loads); k("s_waitcnt vmcnt(0)"); k(check)
        k(f"{br} {name}_loop")
        k.label(f"{name}_out")
        k(f"s_waitcnt vmcnt(0)\ns_nop 7\ns_branch {name}_ok")
    return k

HEADER = """; Fused kernel: preLN -> 2-D spectral filter (MFMA FFTs) -> residual -> preLN -> squared-ReLU MLP -> residual.
"""
def build_all(diag=False, opt=None):
    k = gen(diag, opt); t = k.text()
    nbytes = (sum(0 if i.raw else 8 for i in k.ins) + 127) & ~127
    k = gen(diag, opt, nbytes); t = k.text()
    lst = (opt or {}).get("aslist")
    launch = f"; @launch kernel={NAME} grid=(256,1,1) block=(256,1,1) lds={LDS_BYTES}" if lst else f"; @launch grid=(256,1,1) block=(256,1,1) lds={LDS_BYTES}"
    return "\n".join([HEADER + launch, '.amdgcn_target "amdgcn-amd-amdhsa--gfx950"', t, ".fill 4096, 4, 0xbf800000",
                      '.section .rodata,"a"', kd(NAME, 512, 256, 102)]) + "\n"

if __name__ == "__main__":
    diag = "diag" in sys.argv
    opt = json.loads(sys.argv[-1]) if sys.argv[-1].startswith("{") else {}
    sys.stdout.write(build_all(diag, opt))
```

```python
import sys, json
from asmgen import *
NAME = "sequential_preLN__spectral_gfnet__dense_activation_squared_relu__prompt_kernel"
MB = 1 << 20; KB = 1024
WS_EP, WS_FL, WS_WF, WS_WB, WS_X, WS_ALT, WS_DBG = 0, 4096, 128*KB, 192*KB, 1*MB, 12*MB, 24*MB
W_BYTES = 1376*KB
OOB = 0x7ff00000
GS = 262144
HT = 43*1024
LX, XP = 0, 1040
LE0 = 8320; LRS = LE0 + 16*528
LE1 = 17024
LST = 25216
LSP = 25472
LG = 41856
KP = 13504
LW2 = LG + 65536
RP = 5248
LRD = (0, LW2)
LDS_BYTES = LG + 8*KP
MF = "v_mfma_f32_16x16x32_bf16"; MF16 = "v_mfma_f32_16x16x16_bf16"
def R(b, n=4, f="v"): return f"{f}[{b}:{b+n-1}]"

def srd(k, Rr, lo, size, add=0):
    if add: k(f"s_add_u32 s{Rr}, s{lo}, {add}\ns_addc_u32 s{Rr+1}, s{lo+1}, 0")
    else: k(f"s_mov_b32 s{Rr}, s{lo}\ns_mov_b32 s{Rr+1}, s{lo+1}")
    k(f"s_mov_b32 s{Rr+2}, {size}\ns_mov_b32 s{Rr+3}, 0x20000")

def gen(diag=False, opt=None, code_bytes=32768):
    opt = opt or {}
    k = Kernel(NAME)
    slow = []; nst = [0]
    ALT = (WS_ALT - WS_X) if opt.get("no_overlay") else 0
    cnt = [0]
    def stamp():
        if opt.get("probe") is not None:
            if cnt[0] == 0: k("s_memrealtime s[100:101]"); k.ins[-1].kind = "salu"
            if cnt[0] == opt["probe"]: k("s_memrealtime s[98:99]"); k.ins[-1].kind = "salu"
            cnt[0] += 1
        if diag and nst[0] < 13:
            k(f"s_memtime s[{74+2*nst[0]}:{75+2*nst[0]}]"); k.ins[-1].kind = "salu"; nst[0] += 1
    def poll(loads, check, name, br="s_cbranch_vccnz"):
        k(check); k(f"{br} {name}_retry"); k.label(f"{name}_ok")
        slow.append((name, loads, check, br))
    def tagcheck(regs):
        return "\n".join(f"v_cmpx_eq_u32 vcc, s72, v{r}" for r in regs) + "\ns_cmp_eq_u64 exec, -1\ns_mov_b64 exec, -1"
    k("s_cmp_ge_u32 s2, 256\ns_cbranch_scc1 L_end")
    stamp()
    if diag: k("s_memrealtime s[100:101]"); k.ins[-1].kind = "salu"
    k("""s_load_dwordx2 s[20:21], s[0:1], 80
    s_load_dwordx4 s[4:7], s[0:1], 0
    s_load_dwordx2 s[8:9], s[0:1], 16
    s_load_dwordx8 s[12:19], s[0:1], 32
    s_load_dwordx2 s[10:11], s[0:1], 64
""")
    k("s_getpc_b64 s[62:63]")
    nl = (code_bytes + 127)//128; per = (nl + 31)//32
    k(f"""s_lshr_b32 s26, s2, 3
    s_mul_i32 s64, s26, {per*128}
    v_subrev_u32 v6, {opt.get("pf_head", 48)}, v0
    v_lshlrev_b32 v5, 7, v0
    v_min_u32 v4, {per-1}, v6
    v_lshlrev_b32 v4, 7, v4
    v_add_u32 v4, s64, v4
    v_cmp_gt_i32 vcc, 0, v6
    v_min_u32 v4, {code_bytes - 1024}, v4
    v_cndmask_b32 v4, v4, v5, vcc
    v_cmp_gt_u32 vcc, 64, v0
    s_and_saveexec_b64 s[66:67], vcc
    s_cbranch_execz L_nopf
    global_load_dword v152, v4, s[62:63]""")
    k.label("L_nopf")
    k("s_mov_b64 exec, s[66:67]")
    k("""    v_lshrrev_b32 v2, 6, v0
    v_mov_b32 v1, v0
    v_and_b32 v0, 63, v0
    v_readfirstlane_b32 s3, v2
    s_getreg_b32 s71, hwreg(HW_REG_XCC_ID)
    s_and_b32 s25, s2, 7
    s_bfe_u32 s24, s2, 0x30003
    s_lshr_b32 s26, s2, 3
    s_lshr_b32 s27, s2, 6
    s_lshl_b32 s23, s25, 2
    s_add_u32 s23, s23, s27
    s_lshl_b32 s22, s23, 3
    s_add_u32 s22, s22, s24""")
    k(f"""s_and_b32 s56, s23, 3
    s_lshl_b32 s56, s56, 9
    s_lshl_b32 s57, s24, 4
    s_add_u32 s56, s56, s57
    s_lshr_b32 s57, s23, 3
    s_lshl_b32 s57, s57, 1
    s_add_u32 s56, s56, s57
    s_bfe_u32 s57, s23, 0x10002
    s_add_u32 s73, s56, s57
    s_and_b32 s57, s3, 1
    s_lshl_b32 s57, s57, 8
    s_add_u32 s56, s73, s57
    s_lshr_b32 s57, s3, 1
    s_lshl_b32 s57, s57, 3
    s_add_u32 s56, s56, s57
    s_lshl_b32 s56, s56, 10
    s_add_u32 s57, s56, 131072
    s_mul_i32 s58, s3, {2*XP}
    v_lshlrev_b32 v12, 4, v0
    v_and_b32 v8, 15, v0
    v_lshrrev_b32 v9, 4, v0
    v_and_b32 v10, 7, v0
    v_bfe_u32 v11, v0, 3, 1""")
    k(f"""s_and_b32 s60, s22, 15
    s_lshr_b32 s61, s22, 6
    s_lshl_b32 s61, s61, 6
    s_add_u32 s60, s60, s61
    s_bfe_u32 s61, s22, 0x20004
    s_lshl_b32 s61, s61, 9
    s_add_u32 s60, s60, s61
    s_mul_i32 s61, s60, 514
    s_lshl_b32 s59, s3, 7
    s_add_u32 s61, s61, s59
    v_mul_u32_u24 v3, {16*514}, v9
    v_mul_u32_u24 v2, {256*514}, v11
    v_add_u32 v3, v3, v2
    v_lshl_add_u32 v3, v10, 4, v3
    s_lshl_b32 s59, s3, 11
    s_add_u32 s59, s59, {LSP}
    s_waitcnt lgkmcnt(0)
    s_load_dword s72, s[20:21], {WS_EP}""")
    k.ins[-1].kind = "salu"
    srd(k, 32, 4, 2*MB)
    k("s_mov_b32 m0, s58")
    k("buffer_load_dwordx4 v12, s[32:35], s56 offen lds", tag="x")
    k(f"s_add_u32 m0, s58, {XP}")
    k("buffer_load_dwordx4 v12, s[32:35], s57 offen lds", tag="x")
    srd(k, 36, 6, 2048*514)
    srd(k, 40, 8, 2048*514)
    k("s_mov_b32 m0, s59")
    k("buffer_load_dwordx4 v3, s[36:39], s61 offen lds", tag="W")
    k(f"s_add_u32 m0, s59, 1024")
    k("buffer_load_dwordx4 v3, s[40:43], s61 offen lds", tag="W")
    srd(k, 28, 20, 32*MB)
    k(f"""v_mov_b32 v196, -1
    v_mov_b32 v197, -1
    v_mov_b32 v198, -1
    v_mov_b32 v199, -1
    v_lshlrev_b32 v2, 4, v1
    s_lshl_b32 s64, s23, 18
    s_lshl_b32 s68, s24, 13
    s_add_u32 s64, s64, s68
    s_add_u32 s64, s64, {WS_X + 131072}
    s_add_u32 s68, s64, 4096""")
    k("buffer_store_dwordx4 v[196:199], v2, s[28:31], s64 offen sc1\nbuffer_store_dwordx4 v[196:199], v2, s[28:31], s68 offen sc1", tag="clr")
    srd(k, 44, 12, W_BYTES)
    srd(k, 48, 16, W_BYTES)
    srd(k, 52, 10, 2*MB)
    def touch(name, dst):
        with k.capture() as L:
            if name[:2] == "w1":
                nl = 43
                k(f"s_mul_i32 s64, s26, {16*2752}\ns_mul_i32 s68, s3, {43*128}\ns_add_u32 s64, s64, s68")
                if name == "w1b": k(f"s_add_u32 s64, s64, {8*2752}")
            else:
                nl = 48 if name == "w2a" else 40
                k(f"""s_lshr_b32 s64, s26, 3
                s_mul_i32 s64, s64, {352*1024}
                s_and_b32 s68, s26, 7
                s_lshl_b32 s68, s68, 2
                s_add_u32 s68, s68, s3
                s_mul_i32 s68, s68, {nl*128}
                s_add_u32 s64, s64, s68""")
                if name == "w2b": k(f"s_add_u32 s64, s64, {192*1024}")
            sr = 44 if name[:2] == "w1" else 48
            k(f"""v_min_u32 v6, {nl-1}, v0
            v_lshlrev_b32 v6, 7, v6
            buffer_load_dword v{dst}, v6, s[{sr}:{sr+3}], s64 offen""")
        return [] if name in opt.get("skip", []) else L
    with k.capture() as early:
        k(f"""v_bfe_u32 v4, v0, 3, 2
        v_lshlrev_b32 v4, 4, v4
        v_bfe_u32 v5, v0, 2, 1
        v_lshl_add_u32 v4, v5, 8, v4
        v_add_u32 v4, s60, v4
        v_sub_u32 v5, 2048, v4
        v_and_b32 v5, 2047, v5
        v_and_b32 v6, 1, v0
        v_mul_u32_u24 v5, v5, v6
        v_xor_b32 v6, 1, v6
        v_mad_u32_u24 v4, v4, v6, v5
        v_mul_u32_u24 v4, 514, v4
        v_bfe_u32 v5, v0, 1, 1
        v_lshl_add_u32 v4, v5, 9, v4
        v_lshrrev_b32 v5, 5, v1
        v_min_u32 v5, 1, v5
        v_lshl_add_u32 v4, v5, 30, v4
        buffer_load_ushort v144, v4, s[36:39], 0 offen
        buffer_load_ushort v145, v4, s[40:43], 0 offen""")
        k(f"""s_lshl_b32 s65, s23, 11
        s_add_u32 s65, s65, {WS_FL}
        v_min_u32 v6, 9, v1
        v_lshlrev_b32 v6, 7, v6
        buffer_load_dword v153, v6, s[28:31], s65 offen""")
    with k.capture() as cA:
        k(f"""v_cvt_f32_u32 v24, v8
        v_lshlrev_b32 v25, 2, v9
        v_cvt_f32_u32 v25, v25
        v_mul_f32 v26, {f2h(1/32)}, v24
        v_cmp_eq_u32 vcc, 0, v8
        v_mov_b32 v27, 0.5
        v_mov_b32 v28, {f2h(0.25)}
        v_mov_b32 v87, {f2h(1/16)}
        v_cndmask_b32 v27, v26, v27, vcc
        v_cndmask_b32 v28, v28, 0, vcc
        v_cndmask_b32 v87, 0, v87, vcc""")
        for jp in range(4):
            for q in range(2):
                j = 2*jp + q
                k(f"""v_add_f32 v29, {f2h(float((j & 3) + 16*(j >> 2)))}, v25
                v_mul_f32 v{88+q}, v29, v26
                v_fma_f32 v{90+q}, v29, v27, v28
                v_cos_f32 v{88+q}, v{88+q}
                v_cos_f32 v{90+q}, v{90+q}""")
            k(f"v_cvt_pk_bf16_f32 v{16+jp}, v88, v89\nv_cvt_pk_bf16_f32 v{20+jp}, v90, v91")
        k(f"""s_lshl_b32 s66, s3, 2
        v_cvt_f32_u32 v26, s66
        v_fmac_f32 v26, {f2h(32.0)}, v24
        v_mul_f32 v26, {f2h(1/512)}, v26
        v_cmp_lt_u32 vcc, 7, v8
        v_mov_b32 v27, 0x80008000
        v_cndmask_b32 v27, 0, v27, vcc""")
        for n in range(4):
            k(f"""v_add_f32 v28, {f2h(n/512)}, v26
            v_mul_f32 v88, v25, v28
            v_add_f32 v90, v88, v28
            v_add_f32 v92, v90, v28
            v_add_f32 v94, v92, v28""")
            for r in range(4):
                k(f"v_sin_f32 v{89+2*r}, v{88+2*r}\nv_cos_f32 v{88+2*r}, v{88+2*r}")
            for r in range(4):
                k(f"""v_cvt_pk_bf16_f32 v{32+8*n+r}, v{88+2*r}, v{89+2*r}
                v_cvt_pk_bf16_f32 v{36+8*n+r}, -v{89+2*r}, v{88+2*r}
                v_xor_b32 v{36+8*n+r}, v27, v{36+8*n+r}""")
        for r in range(64, 80): k(f"v_mov_b32 v{r}, 0")
        k(f"""v_lshlrev_b32 v80, 3, v0
        v_add_u32 v80, s58, v80
        v_mul_u32_u24 v81, 528, v8
        v_lshl_add_u32 v81, v9, 7, v81
        s_lshl_b32 s66, s3, 5
        s_add_u32 s66, s66, {LE0}
        v_add_u32 v81, s66, v81
        v_lshlrev_b32 v82, 4, v10
        v_lshl_add_u32 v82, v9, 7, v82
        s_mul_i32 s66, s3, {4*528}
        s_add_u32 s66, s66, {LE0}
        v_add_u32 v82, s66, v82
        v_and_b32 v83, 1, v9
        v_lshlrev_b32 v84, 2, v83
        s_lshl_b32 s66, s3, 3
        s_add_u32 s66, s66, {LRS}
        v_add_u32 v84, s66, v84
        v_lshlrev_b32 v83, 2, v10
        v_add_u32 v83, {LRS}, v83
        v_lshlrev_b32 v204, 2, v9
        v_sub_u32 v205, 15, v204
        v_min_u32 v204, v204, v205
        v_lshrrev_b32 v205, 1, v9
        v_lshl_add_u32 v204, v204, 1, v205
        v_lshlrev_b32 v204, 19, v204
        v_lshl_add_u32 v204, v8, 3, v204
        v_lshlrev_b32 v205, 21, v205
        v_sub_u32 v85, {4*GS}, v205
        v_add_u32 v205, v204, v85
        v_add_u32 v206, v205, v85
        v_add_u32 v207, v206, v85
        s_lshr_b32 s66, s3, 1
        s_lshl_b32 s66, s66, 18
        s_and_b32 s67, s3, 1
        s_lshl_b32 s67, s67, 16
        s_add_u32 s66, s66, s67
        s_lshl_b32 s67, s22, 7
        s_add_u32 s66, s66, s67
        s_add_u32 s66, s66, {WS_X}
        s_add_u32 s67, s66, 32768
        v_bfe_u32 v200, v0, 2, 2
        v_lshlrev_b32 v200, 7, v200
        v_lshl_add_u32 v200, v9, 5, v200
        v_and_b32 v201, 3, v0
        v_lshl_add_u32 v200, v201, 3, v200
        v_add_u32 v200, s59, v200
        v_lshlrev_b32 v201, 4, v201
        v_bfe_u32 v202, v1, 2, 1
        v_lshl_add_u32 v201, v202, 15, v201
        v_lshrrev_b32 v202, 3, v1
        v_lshl_add_u32 v201, v202, 18, v201
        s_lshl_b32 s59, s22, 7
        s_add_u32 s59, s59, {WS_X + 196608}
        v_mov_b32 v86, 0x3f803f80
        s_mov_b32 s4, 0x00ff00ff
        s_mov_b32 s5, 0x00ff00ff
        s_not_b64 s[6:7], s[4:5]""")
    k.extend(interleave(cA, early + touch("w1a", 154), every=opt.get("early_every", 2)))
    k("s_cmp_lg_u32 s3, 0")
    with k.skippable("s_cbranch_scc1"):
        k(f"""v_cmp_lt_u32 vcc, 7, v8
        v_mul_f32 v26, {f2h(32/512)}, v24
        v_sub_f32 v28, {f2h(496/512)}, v26
        v_cndmask_b32 v26, v26, v28, vcc
        v_mov_b32 v27, 0xffff
        v_mov_b32 v28, 0xffff0000
        v_cndmask_b32 v27, v27, v28, vcc
        v_cmp_eq_u32 vcc, 0, v8""")
        for r in range(4):
            k(f"""v_add_f32 v29, {f2h(float(r))}, v25
            v_mul_f32 v88, v29, v26
            v_sin_f32 v89, v88
            v_cos_f32 v88, v88
            v_mov_b32 v28, {'1.0' if r & 1 else '-1.0'}
            v_cndmask_b32 v89, v89, v28, vcc
            v_cvt_pk_bf16_f32 v{32+r}, v88, v88
            v_cvt_pk_bf16_f32 v{36+r}, -v89, -v89
            v_and_b32 v{32+r}, v27, v{32+r}
            v_and_b32 v{36+r}, v27, v{36+r}""")
    k(f"""s_waitcnt lgkmcnt(0)
    s_add_u32 s72, s72, 0x9e3779b9
    s_and_b32 s71, s71, 15
    s_add_u32 s71, s71, s72
    v_cmp_eq_u32 vcc, 0, v1
    v_mov_b32 v6, {OOB}
    v_mov_b32 v2, s71
    v_cndmask_b32 v6, v6, 0, vcc
    s_lshl_b32 s64, s24, 2
    s_add_u32 s64, s64, s65
    buffer_store_dword v2, v6, s[28:31], s64 offen sc1""")
    for r in range(113, 128, 2): k(f"v_mov_b32 v{r}, s72")
    stamp()
    k.wait_tag("W")
    k(f"""ds_read_b64_tr_b16 v[88:89], v80
    ds_read_b64_tr_b16 v[90:91], v80 offset:512
    ds_read_b64_tr_b16 v[92:93], v80 offset:{XP}
    ds_read_b64_tr_b16 v[94:95], v80 offset:{XP+512}
    ds_read_b64_tr_b16 v[192:193], v200
    ds_read_b64_tr_b16 v[194:195], v200 offset:512
    ds_read_b64_tr_b16 v[196:197], v200 offset:1024
    ds_read_b64_tr_b16 v[198:199], v200 offset:1536
    v_mov_b32 v24, 0
    v_mov_b32 v25, 0
    v_mov_b32 v26, 0
    v_mov_b32 v27, 0
    {MF} v[96:99], v[88:91], v[16:19], 0
    {MF} v[100:103], v[88:91], v[20:23], 0""")
    for j in range(4): k(f"v_dot2c_f32_bf16 v24, v{88+j}, v86\nv_dot2c_f32_bf16 v25, v{88+j}, v{88+j}")
    k(f"{MF} v[104:107], v[92:95], v[16:19], 0\n{MF} v[108:111], v[92:95], v[20:23], 0")
    for j in range(4): k(f"v_dot2c_f32_bf16 v26, v{92+j}, v86\nv_dot2c_f32_bf16 v27, v{92+j}, v{92+j}")
    k("buffer_store_dwordx4 v[192:195], v201, s[28:31], s59 offen sc1", tag="wt")
    k("buffer_store_dwordx4 v[196:199], v201, s[28:31], s59 offen offset:64 sc1", tag="wt")
    k("""v_permlane32_swap_b32 v24, v25
    v_add_f32 v24, v24, v25
    v_permlane32_swap_b32 v26, v27
    v_add_f32 v26, v26, v27
    v_permlane16_swap_b32 v24, v26
    v_add_f32 v24, v24, v26""")
    for sh in (8, 4, 2, 1): k(f"v_add_f32_dpp v24, v24, v24 row_ror:{sh} row_mask:0xf bank_mask:0xf")
    k("v_readlane_b32 s56, v24, 0\nv_readlane_b32 s57, v24, 16\nv_mov_b32 v25, v24")
    for r in range(4): k(f"v_fma_f32 v{96+r}, -v87, s56, v{96+r}")
    k("v_permlane32_swap_b32 v24, v25")
    for r in range(4): k(f"v_cvt_pk_bf16_f32 v{88+r}, v{96+r}, v{100+r}")
    k("ds_write_b128 v81, v[88:91]")
    for r in range(4): k(f"v_fma_f32 v{104+r}, -v87, s57, v{104+r}")
    k(f"v_mul_f32 v24, {f2h(1/512)}, v24\nv_mul_f32 v25, {f2h(1/512)}, v25")
    for r in range(4): k(f"v_cvt_pk_bf16_f32 v{92+r}, v{104+r}, v{108+r}")
    k("ds_write_b128 v81, v[92:95] offset:16")
    k(f"""v_fma_f32 v25, -v24, v24, v25
    v_max_f32 v25, 0, v25
    v_add_f32 v25, {f2h(1e-5)}, v25
    v_rsq_f32 v25, v25
    ds_write_b32 v84, v25""")
    k.wait_tag("clr")
    k.wait_lds(); k("s_barrier")
    k(f"""s_mov_b64 exec, s[4:5]
    ds_read_b128 v[64:67], v82
    ds_read_b128 v[72:75], v82 offset:{2*528}
    s_mov_b64 exec, s[6:7]
    ds_read_b128 v[68:71], v82 offset:528
    ds_read_b128 v[76:79], v82 offset:{3*528}
    s_mov_b64 exec, -1
    ds_read_b32 v28, v83""")
    QP = "row_mask:0xf bank_mask:0xf"
    k(f"""v_lshlrev_b32 v144, 16, v144
    v_lshlrev_b32 v145, 16, v145
    v_mul_f32 v144, {f2h(0.25)}, v144
    v_mul_f32 v145, {f2h(0.25)}, v145
    v_add_f32_dpp v146, v144, v144 quad_perm:[1,0,3,2] {QP}
    v_subrev_f32_dpp v147, v145, v145 quad_perm:[1,0,3,2] {QP}
    v_add_f32_dpp v148, v146, v146 quad_perm:[2,3,0,1] {QP}
    v_add_f32_dpp v149, v147, v147 quad_perm:[2,3,0,1] {QP}
    v_subrev_f32_dpp v150, v146, v146 quad_perm:[2,3,0,1] {QP}
    v_subrev_f32_dpp v151, v147, v147 quad_perm:[2,3,0,1] {QP}
    v_cvt_pk_bf16_f32 v148, v148, v149
    v_cvt_pk_bf16_f32 v149, v150, v151
    v_and_b32 v6, 0xe3, v1
    v_min_u32 v6, 1, v6
    v_lshlrev_b32 v6, 30, v6
    v_lshl_add_u32 v6, v0, 1, v6
    s_lshl_b32 s64, s22, 6
    s_add_u32 s64, s64, {WS_WB}""")
    k("buffer_store_dwordx2 v[148:149], v6, s[28:31], s64 offen sc1", tag="wt")
    for h in range(2):
        for p in range(2):
            for part in range(2):
                d = 96 + 8*p + 4*part
                k(f"{MF} {R(d)}, {R(32+16*p+8*h+4*part)}, {R(64+8*p+4*h)}, {R(d) if h else 0}")
    for p in range(2):
        d = 96 + 8*p
        for q in range(4): k(f"v_pk_mul_f32 {R(d+2*q,2)}, {R(d+2*q,2)}, v[28:29] op_sel_hi:[1,0]")
        for r in range(4):
            k(f"v_cvt_pk_bf16_f32 v{112+8*p+2*r}, v{d+r}, v{d+4+r}")
            k(f"buffer_store_dwordx2 {R(112+8*p+2*r,2)}, v{204+r}, s[28:31], s{66+p} offen sc1")
    stamp()
    if not opt.get("w1b_late"): k.extend(touch("w1b", 155))
    k(f"""v_cmp_lt_u32 vcc, 25, v0
    v_mov_b32 v5, {2752 - 26*16}
    v_cndmask_b32 v5, 0, v5, vcc
    v_cmp_lt_u32 vcc, 51, v0
    v_mov_b32 v6, {16*2752 - 52*16}
    v_cndmask_b32 v5, v5, v6, vcc
    v_add_u32 v7, v5, v12
    v_subrev_u32 v5, 24, v0
    v_cmp_gt_u32 vcc, 2, v5
    v_mov_b32 v6, {OOB}
    v_cndmask_b32 v7, v7, v6, vcc
    v_subrev_u32 v5, 50, v0
    v_cmp_gt_u32 vcc, 2, v5
    v_cndmask_b32 v7, v7, v6, vcc""")
    def w1dma(batch):
        with k.capture() as L:
            k(f"""s_lshl_b32 s68, s3, 1
            s_add_u32 s68, s68, {8*batch}
            s_mul_i32 s68, s68, 2752
            s_mul_i32 s69, s24, 384
            s_add_u32 s68, s68, s69
            s_mul_i32 s69, s3, {2*KP}
            s_add_u32 s69, s69, {LG}""")
            for t in range(2):
                for n in range(16):
                    k(f"s_add_u32 m0, s69, {t*KP + n*832}"); k.ins[-1].glue = True
                    k(f"s_nop 0"); k.ins[-1].glue = True
                    k(f"buffer_load_dwordx4 v7, s[44:47], s68 offen lds", tag=f"w1b{batch}"); k.ins[-1].glue = True
                    k(f"s_add_u32 s68, s68, {16*2752}")
        return L[:7] if f"dma{batch}" in opt.get("skip", []) else L
    def w1tr(batch, a0):
        k(f"""v_bfe_u32 v{a0}, v0, 2, 2
        v_lshl_add_u32 v{a0}, v9, 3, v{a0}
        v_mul_u32_u24 v{a0}, 416, v{a0}
        v_and_b32 v{a0+1}, 3, v0
        v_lshl_add_u32 v{a0}, v{a0+1}, 3, v{a0}
        s_lshr_b32 s68, s3, 1
        s_mul_i32 s68, s68, 192
        s_and_b32 s69, s3, 1
        s_lshl_b32 s69, s69, 5
        s_add_u32 s68, s68, {LG}
        s_add_u32 s69, s69, s68
        s_add_u32 s69, s69, 64
        v_add_u32 v{a0+1}, s69, v{a0}
        s_and_b32 s69, s3, 1
        s_lshl_b32 s69, s69, 7
        s_add_u32 s69, s69, s68
        v_add_u32 v{a0}, s69, v{a0}
        v_add_u32 v{a0+2}, {4*KP}, v{a0}
        v_add_u32 v{a0+3}, {4*KP}, v{a0+1}""")
        for kl in range(8):
            kap = 8*batch + kl
            for tau in range(3):
                a = a0 + 2*(kl >> 2) + (1 if tau == 2 else 0)
                off = (kl & 3)*KP + (32 if tau == 1 else 0)
                d = (tau*16 + kap)*4
                k(f"ds_read_b64_tr_b16 {R(d,2,'a')}, v{a} offset:{off}\nds_read_b64_tr_b16 {R(d+2,2,'a')}, v{a} offset:{off+4*416}")
    with k.capture() as cB:
        k(f"""v_cvt_f32_u32 v156, v8
        v_lshlrev_b32 v157, 2, v9
        v_cvt_f32_u32 v157, v157
        s_lshl_b32 s56, s3, 1
        v_cvt_f32_u32 v158, s56""")
        def mats(base, inv, lane_is_k, N1, N):
            for e in range(2):
                if lane_is_k:
                    k(f"""v_mul_f32 v159, {f2h(1/N)}, v156
                    v_add_f32 v160, {f2h(float(e))}, v158
                    v_fmac_f32 v160, {f2h(float(N1))}, v157
                    v_mul_f32 v160, v160, v159
                    v_mul_f32 v159, {f2h(float(N1))}, v159""")
                else:
                    k(f"""v_add_f32 v159, {f2h(float(e))}, v158
                    v_fmac_f32 v159, {f2h(float(N1))}, v156
                    v_mul_f32 v159, {f2h(1/N)}, v159
                    v_mul_f32 v160, v157, v159""")
                k("v_add_f32 v162, v160, v159\nv_add_f32 v164, v162, v159\nv_add_f32 v166, v164, v159")
                for r in range(4): k(f"v_sin_f32 v{161+2*r}, v{160+2*r}\nv_cos_f32 v{160+2*r}, v{160+2*r}")
                for r in range(4):
                    d, co, si = base + 8*e + r, 160 + 2*r, 161 + 2*r
                    if inv: k(f"v_cvt_pk_bf16_f32 v{d}, v{co}, -v{si}\nv_cvt_pk_bf16_f32 v{d+4}, v{si}, v{co}")
                    else: k(f"v_cvt_pk_bf16_f32 v{d}, v{co}, v{si}\nv_cvt_pk_bf16_f32 v{d+4}, -v{si}, v{co}")
        mats(56, False, True, 128, 2048)
        k(f"""v_mul_f32 v159, {f2h(1/256)}, v156
        v_mul_f32 v120, v157, v159
        v_add_f32 v121, v120, v159
        v_add_f32 v122, v121, v159
        v_add_f32 v123, v122, v159""")
        for r in range(4): k(f"v_sin_f32 v{124+r}, v{120+r}\nv_cos_f32 v{120+r}, v{120+r}")
        mats(72, False, True, 8, 128)
        k(f"""v_lshrrev_b32 v159, 1, v8
        v_cvt_f32_u32 v159, v159
        v_mul_f32 v159, {f2h(1/8)}, v159
        v_and_b32 v160, 1, v8
        v_cvt_f32_u32 v160, v160
        v_mul_f32 v160, {f2h(0.25)}, v160
        v_mul_f32 v165, 0.5, v157""")
        for e in range(2):
            if e: k("v_add_f32 v165, 1.0, v165")
            k(f"""v_fma_f32 v161, v159, v165, v160
            v_fma_f32 v163, -v159, v165, v160
            v_sin_f32 v162, v161
            v_cos_f32 v161, v161
            v_sin_f32 v164, v163
            v_cos_f32 v163, v163
            v_cvt_pk_bf16_f32 v{128+e}, v161, v162
            v_mul_f32 v163, {f2h(2.0**-19)}, v163
            v_mul_f32 v164, {f2h(2.0**-19)}, v164
            v_cvt_pk_bf16_f32 v{130+e}, v163, v164""")
        mats(88, True, False, 8, 128)
        mats(104, True, False, 128, 2048)
        k(f"""v_lshlrev_b32 v168, 10, v9
        v_lshl_add_u32 v168, v8, 4, v168
        s_lshl_b32 s56, s3, 8
        v_add_u32 v168, s56, v168
        s_lshl_b32 s56, s3, 10
        v_add_u32 v169, s56, v12
        v_lshlrev_b32 v170, 18, v9
        v_lshl_add_u32 v170, v8, 4, v170
        v_lshrrev_b32 v171, 1, v8
        v_lshlrev_b32 v171, 7, v171
        v_lshl_add_u32 v171, v9, 10, v171
        v_and_b32 v172, 1, v8
        v_lshl_add_u32 v171, v172, 5, v171
        v_lshlrev_b32 v172, 7, v1
        v_lshlrev_b32 v173, 6, v1
        v_lshlrev_b32 v175, 6, v1
        s_lshl_b32 s56, s23, 18
        s_lshr_b32 s57, s24, 1
        s_lshl_b32 s57, s57, 15
        s_add_u32 s56, s56, s57
        s_and_b32 s57, s24, 1
        s_lshl_b32 s57, s57, 6
        s_add_u32 s56, s56, s57
        s_lshl_b32 s57, s3, 13
        s_add_u32 s56, s56, s57
        s_add_u32 s56, s56, {WS_X}
        s_add_u32 s57, s56, 4096
        s_and_b32 s60, s27, 1
        s_lshl_b32 s60, s60, 3
        s_add_u32 s60, s60, s24
        s_sub_u32 s58, 32, s60
        s_cmp_eq_u32 s60, 0
        s_cselect_b32 s58, 16, s58
        s_cmp_ge_u32 s27, 2
        s_cselect_b32 s58, s58, s60
        s_lshl_b32 s59, s25, 5
        s_add_u32 s59, s59, s58
        s_and_b32 s58, s59, 3
        s_lshl_b32 s58, s58, 4
        s_bfe_u32 s61, s59, 0x10002
        s_lshl_b32 s61, s61, 15
        s_add_u32 s58, s58, s61
        s_lshr_b32 s59, s59, 3
        s_lshl_b32 s59, s59, 18
        s_add_u32 s58, s58, s59
        s_add_u32 s58, s58, {WS_X + 196608}
        s_lshr_b32 s59, s25, 1
        s_lshl_b32 s59, s59, 14
        s_add_u32 s59, s59, {WS_WF}
        s_lshl_b32 s60, s60, 4
        s_sub_u32 s61, 15, s25
        s_cmp_ge_u32 s27, 2
        s_cselect_b32 s61, s61, s25
        s_add_u32 s60, s60, s61
        s_lshl_b32 s60, s60, 8
        s_lshl_b32 s61, s3, 21
        s_add_u32 s60, s60, s61
        s_add_u32 s60, s60, {WS_X + 131072}
        s_add_u32 s61, s60, {4*GS}""")
    for x_ in cB:
        if x_.op.startswith("s_cmp"): x_.glue = True
    nb = opt.get("cB_split", 150)
    d0 = w1dma(0)
    k.extend(interleave(cB[:nb], d0[:7+4*opt.get('d0_split', 14)], every=opt.get("x1_every", 9)))
    k(f"""v_cmp_gt_u32 vcc, 16, v0
    v_mov_b32 v5, {OOB}
    v_lshlrev_b32 v4, 2, v0
    v_mov_b32 v6, s72
    v_cndmask_b32 v5, v5, v4, vcc
    s_lshl_b32 s64, s3, 14
    s_lshl_b32 s66, s22, 6
    s_add_u32 s64, s64, s66
    s_add_u32 s64, s64, {WS_WF}""")
    if opt.get("st_wt"): stamp()
    k.wait_tag("wt")
    if opt.get("st_wt"): stamp()
    k("buffer_store_dword v6, v5, s[28:31], s64 offen sc1")
    if opt.get("w1b_late"): k.extend(touch("w1b", 155))
    k.extend(interleave(cB[nb:], d0[7+4*opt.get('d0_split', 14):], every=opt.get("x1_every", 9)))
    srd(k, 32, 20, 16384, WS_WB)
    k("s_cmp_eq_u32 s22, 0\ns_cselect_b32 s34, 16384, 0")
    stamp()
    zl = "\n".join(f"buffer_load_dwordx4 {R(176+8*e+4*q)}, v171, s[28:31], s{56+e} offen offset:{16*q} sc1" for e in range(2) for q in range(2))
    wfl = "buffer_load_dword v174, v173, s[28:31], s59 offen sc1"
    k(wfl)
    poll(wfl, "v_cmp_ne_u32 vcc, s72, v174", "pwf")
    if opt.get("st_wt"): stamp()
    k(zl)
    k("""buffer_load_dwordx4 v[24:27], v172, s[28:31], s58 offen sc1
    buffer_load_dwordx4 v[28:31], v172, s[28:31], s58 offen offset:64 sc1""")
    for q in range(4): k(f"buffer_load_dwordx4 {R(192+4*q)}, v175, s[32:35], 0 offen offset:{16*q} sc1")
    k.extend(touch("w2a", 33))
    poll(zl, tagcheck(range(177, 192, 2)), "pz", "s_cbranch_scc0")
    stamp()
    for e in range(2):
        for r in range(4): k(f"v_mov_b32 v{16+4*e+r}, v{176+8*e+2*r}")
    def twiddle(sign):
        for e in range(2):
            re, im = 132 + 8*e, 136 + 8*e
            for q in range(2):
                a, b = 156 + 4*e + 2*q, 148 + 4*e + 2*q
                n1_, n2_ = ("neg_lo:[0,1,0] neg_hi:[0,1,0]", "") if sign > 0 else ("", "neg_lo:[0,1,0] neg_hi:[0,1,0]")
                k(f"""v_pk_mul_f32 {R(a,2)}, {R(re+2*q,2)}, {R(120+2*q,2)}
                v_pk_mul_f32 {R(b,2)}, {R(im+2*q,2)}, {R(120+2*q,2)}
                v_pk_fma_f32 {R(a,2)}, {R(im+2*q,2)}, {R(124+2*q,2)}, {R(a,2)} {n1_}
                v_pk_fma_f32 {R(b,2)}, {R(re+2*q,2)}, {R(124+2*q,2)}, {R(b,2)} {n2_}""")
            for r in range(4): k(f"v_cvt_pk_bf16_f32 v{16+4*e+r}, v{156+4*e+r}, v{148+4*e+r}")
    def stage(cbase, data_is_A):
        for e in range(2):
            for part in range(2):
                c_ = R(cbase + 8*e + 4*part); d_ = R(16 + 4*e)
                k(f"{MF} {R(132+8*e+4*part)}, {d_ if data_is_A else c_}, {c_ if data_is_A else d_}, 0")
    stage(56, True)
    twiddle(-1)
    stage(72, False)
    for e in range(2):
        for r in range(4): k(f"v_cvt_pk_bf16_f32 v{16+2*r+e}, v{132+8*e+r}, v{136+8*e+r}")
    k(f"ds_write_b128 v168, v[16:19] offset:{LE1}\nds_write_b128 v168, v[20:23] offset:{LE1+4096}")
    k.wait_lds(); k("s_barrier")
    k(f"ds_read_b128 v[16:19], v169 offset:{LE1}\nds_read_b128 v[20:23], v169 offset:{LE1+4096}")
    for n in range(8):
        for p_ in range(2):
            k(f"v_lshlrev_b32 v{40+2*n+p_}, 16, v{24+4*p_+(n>>1)}" if n % 2 == 0 else f"v_and_b32 v{40+2*n+p_}, 0xffff0000, v{24+4*p_+(n>>1)}")
    for r in range(4): k(f"{MF16} {R(132+4*r)}, v[128:129], {R(16+2*r,2)}, 0")
    for n in range(8): k(f"v_pk_mul_f32 {R(148+2*n,2)}, {R(132+2*n,2)}, {R(40+2*n,2)} op_sel:[0,0] op_sel_hi:[1,0]")
    for n in range(8): k(f"v_pk_fma_f32 {R(148+2*n,2)}, {R(132+2*n,2)}, {R(40+2*n,2)}, {R(148+2*n,2)} op_sel:[1,1,0] op_sel_hi:[0,1,1] neg_lo:[0,1,0]")
    k("s_cmp_lg_u32 s22, 0")
    with k.skippable("s_cbranch_scc1"):
        k(f"""s_lshl_b32 s64, s3, 6
        v_lshl_add_u32 v174, v9, 9, v8
        v_add_u32 v174, s64, v174
        v_lshlrev_b32 v175, 3, v174""")
        for n in range(8): k(f"ds_write_b64 v175, {R(132+2*n,2)} offset:{LSP + 8*(16*(n>>1) + 256*(n&1))}")
        for n in range(8): k(f"v_lshlrev_b32 v{40+2*n}, 16, v{192+2*n}\nv_and_b32 v{41+2*n}, 0xffff0000, v{192+2*n}")
        for n in range(8): k(f"v_pk_mul_f32 {R(148+2*n,2)}, {R(132+2*n,2)}, {R(40+2*n,2)} op_sel:[0,0] op_sel_hi:[1,0]")
        for n in range(8): k(f"v_pk_fma_f32 {R(148+2*n,2)}, {R(132+2*n,2)}, {R(40+2*n,2)}, {R(148+2*n,2)} op_sel:[1,1,0] op_sel_hi:[0,1,1] neg_lo:[0,1,0]")
        k.wait_lds(); k("s_barrier")
        for n in range(8):
            k(f"""v_sub_u32 v175, {2048 - (16*(n>>1) + 256*(n&1))}, v174
            v_and_b32 v175, 2047, v175
            v_lshlrev_b32 v175, 3, v175
            ds_read_b64 {R(132+2*n,2)}, v175 offset:{LSP}
            v_lshlrev_b32 v{40+2*n}, 16, v{193+2*n}
            v_and_b32 v{41+2*n}, 0xffff0000, v{193+2*n}""")
        for n in range(8):
            F = R(132+2*n, 2); W = R(40+2*n, 2); T = R(148+2*n, 2)
            k(f"""v_pk_fma_f32 {T}, {F}, {W}, {T} op_sel:[0,0,0] op_sel_hi:[1,0,1] neg_hi:[1,0,0]
            v_pk_fma_f32 {T}, {F}, {W}, {T} op_sel:[1,1,0] op_sel_hi:[0,1,1]""")
    for n in range(8): k(f"v_cvt_pk_bf16_f32 v{16+n}, v{148+2*n}, v{149+2*n}")
    for r in range(4): k(f"{MF16} {R(132+4*r)}, v[130:131], {R(16+2*r,2)}, 0")
    for r in range(4):
        for e in range(2): k(f"v_cvt_pk_bf16_f32 v{24+4*e+r}, v{132+4*r+2*e}, v{133+4*r+2*e}")
    k(f"ds_write_b128 v168, v[24:27] offset:{LE0}\nds_write_b128 v168, v[28:31] offset:{LE0+4096}")
    k.wait_lds(); k("s_barrier")
    k(f"ds_read_b128 v[16:19], v169 offset:{LE0}\nds_read_b128 v[20:23], v169 offset:{LE0+4096}")
    stage(88, True)
    twiddle(+1)
    stage(104, False)
    for e in range(2):
        for r in range(4): k(f"v_cvt_pk_bf16_f32 v{224+4*e+r}, v{132+8*e+r}, v{136+8*e+r}")
        k(f"buffer_store_dwordx4 {R(224+4*e)}, v170, s[28:31], s{60+e} offen sc1")
    stamp()
    k.extend(touch("w2b", 24))
    w1tr(0, 16)
    k(f"""v_mul_u32_u24 v20, {XP}, v10
    v_lshl_add_u32 v20, v9, 7, v20
    v_lshl_add_u32 v20, v11, 2, v20
    s_lshl_b32 s56, s3, 3
    v_add_u32 v20, s56, v20""")
    for t in range(2):
        for r in range(4): k(f"ds_read_b32 v{208+4*t+r}, v20 offset:{512*t+32*r}")
    k.wait_lds(); k("s_barrier")
    with k.capture() as cC:
        k(f"""v_cvt_f32_u32 v248, v8
        v_lshlrev_b32 v249, 2, v9
        v_cvt_f32_u32 v249, v249
        v_mul_f32 v250, {f2h(1/16)}, v248
        v_cmp_lt_u32 vcc, 1, v9
        v_mov_b32 v251, 0x80000000
        v_mul_f32 v240, v249, v250
        v_cndmask_b32 v251, 0, v251, vcc
        v_add_f32 v242, v240, v250
        v_add_f32 v244, v242, v250
        v_add_f32 v246, v244, v250""")
        for r in range(4): k(f"v_sin_f32 v{241+2*r}, v{240+2*r}\nv_cos_f32 v{240+2*r}, v{240+2*r}")
        for r in range(4):
            k(f"""v_cvt_pk_bf16_f32 v{144+r}, v{240+2*r}, -v{241+2*r}
            v_cvt_pk_bf16_f32 v{148+r}, v{241+2*r}, v{240+2*r}
            v_xor_b32 v{144+r}, v251, v{144+r}
            v_xor_b32 v{148+r}, v251, v{148+r}""")
        k(f"""s_lshl_b32 s56, s3, 2
        v_cvt_f32_u32 v250, s56
        v_fmac_f32 v250, {f2h(16.0)}, v248
        v_mul_f32 v250, {f2h(1/512)}, v250
        v_mul_f32 v254, 0.5, v248
        v_mov_b32 v255, {f2h(0.25)}
        v_cmp_eq_u32 vcc, 0, v9
        v_cndmask_b32 v254, v255, v254, vcc""")
        for n in range(4):
            for t in range(2):
                d = 160 + 8*n + 4*t
                k(f"""v_add_f32 v251, {f2h((256*t + n)/512)}, v250
                v_mul_f32 v240, v249, v251
                v_add_f32 v241, v240, v254
                v_add_f32 v242, v240, v251
                v_cos_f32 v240, v240
                v_cos_f32 v241, v241
                v_add_f32 v244, v242, v251
                v_sin_f32 v243, v242
                v_cos_f32 v242, v242
                v_add_f32 v246, v244, v251
                v_sin_f32 v245, v244
                v_cos_f32 v244, v244
                v_cvt_pk_bf16_f32 v{d}, v240, v241
                v_sin_f32 v247, v246
                v_cos_f32 v246, v246
                v_cvt_pk_bf16_f32 v{d+1}, v242, -v243
                v_cvt_pk_bf16_f32 v{d+2}, v244, -v245
                v_cvt_pk_bf16_f32 v{d+3}, v246, -v247""")
        for r in range(128, 144): k(f"v_mov_b32 v{r}, 0")
        for t in range(2):
            for r in range(4):
                k(f"v_lshlrev_b32 v{192+4*t+r}, 16, v{208+4*t+r}\nv_and_b32 v{200+4*t+r}, 0xffff0000, v{208+4*t+r}")
        k(f"""v_lshlrev_b32 v16, 13, v11
        v_lshl_add_u32 v16, v9, 10, v16
        v_lshl_add_u32 v16, v10, 2, v16
        s_lshl_b32 s62, s23, 18
        s_add_u32 s62, s62, {WS_X}
        s_lshl_b32 s56, s3, 14
        s_add_u32 s56, s56, s62
        s_lshl_b32 s57, s24, 5
        s_add_u32 s56, s56, s57
        s_add_u32 s56, s56, 131072
        s_add_u32 s57, s56, 4096
        s_add_u32 s62, s62, {ALT}
        v_lshlrev_b32 v18, 4, v10
        v_lshl_add_u32 v17, v9, 11, v18
        v_lshl_add_u32 v17, v11, 3, v17
        s_lshl_b32 s58, s3, 7
        s_add_u32 s58, s58, {LE1}
        v_add_u32 v17, s58, v17
        v_lshl_add_u32 v19, v9, 8, v18
        v_lshl_add_u32 v19, v11, 11, v19
        v_lshl_add_u32 v18, v9, 7, v18
        s_lshl_b32 s58, s3, 11
        s_add_u32 s58, s58, {LE1}
        v_add_u32 v18, s58, v18
        v_lshlrev_b32 v21, 5, v10
        v_add_u32 v21, {LST}, v21
        v_lshrrev_b32 v20, 5, v0
        v_lshl_add_u32 v20, v20, 4, v21
        s_lshl_b32 s58, s3, 2
        v_add_u32 v20, s58, v20
        s_lshr_b32 s58, s24, 1
        s_lshl_b32 s58, s58, 14
        s_add_u32 s58, s58, s62
        s_lshl_b32 s59, s3, 12
        s_add_u32 s58, s58, s59
        s_and_b32 s59, s24, 1
        s_lshl_b32 s59, s59, 7
        s_add_u32 s58, s58, s59
        v_lshlrev_b32 v22, 2, v10
        v_lshlrev_b32 v23, 3, v0
        v_cmp_gt_u32 vcc, 8, v1
        v_mov_b32 v255, {OOB}
        v_cndmask_b32 v23, v255, v23, vcc
        s_lshl_b32 s59, s24, 6
        s_add_u32 s59, s59, s65
        v_mov_b32 v255, 0x3f803f80""")
    k.extend(interleave(cC, w1dma(1), every=opt.get("x2_every", 9)))
    k("s_cmp_lg_u32 s3, 0")
    with k.skippable("s_cbranch_scc1"):
        k(f"""v_cmp_lt_u32 vcc, 1, v9
        v_mul_f32 v241, {f2h(1/512)}, v248
        v_mul_f32 v240, {f2h(32.0)}, v249
        v_sub_f32 v246, {f2h(496.0)}, v240
        v_mov_b32 v245, {f2h(32.0)}
        v_cndmask_b32 v240, v240, v246, vcc
        v_cndmask_b32 v245, v245, -v245, vcc""")
        for r in range(4):
            k(f"""v_mul_f32 v242, v240, v241
            v_add_f32 v240, v240, v245
            v_sin_f32 v243, v242
            v_cos_f32 v242, v242
            v_cvt_pk_bf16_f32 v244, v242, -v243
            v_cndmask_b32 v{152+r}, v244, 0, vcc
            v_cndmask_b32 v{156+r}, 0, v244, vcc""")
        k(f"""v_and_b32 v242, 1, v8
        v_lshlrev_b32 v242, 31, v242
        v_or_b32 v242, 0x3f003f00, v242
        v_cmp_eq_u32 vcc, 0, v9
        v_cndmask_b32 v152, v152, v242, vcc""")
    idl = "buffer_load_dword v254, v22, s[28:31], s65 offen sc1"
    zl2 = "\n".join(f"buffer_load_dword v{216+4*p+r}, v16, s[28:31], s{56+p} offen offset:{256*r} sc1" for p in range(2) for r in range(4))
    stamp()
    k(idl); k(zl2)
    poll(idl, "v_subrev_u32 v253, s72, v254\nv_cmp_lt_u32 vcc, 15, v253", "pid")
    k("v_cmp_ne_u32 vcc, s71, v254\ns_cmp_eq_u64 vcc, 0\ns_cselect_b32 s70, 1, 0")
    if opt.get("force_slow"): k("s_mov_b32 s70, 0")
    poll(zl2, """v_max3_u32 v240, v216, v217, v218
    v_max3_u32 v241, v219, v220, v221
    v_max3_u32 v240, v240, v222, v223
    v_max_u32 v240, v240, v241
    v_cmp_eq_u32 vcc, -1, v240""", "pz2")
    stamp()
    k(f"{MF} {R(224)}, {R(144)}, {R(216)}, 0\n{MF} {R(228)}, {R(148)}, {R(216)}, 0")
    k(f"{MF} {R(232)}, {R(144)}, {R(220)}, 0\n{MF} {R(236)}, {R(148)}, {R(220)}, 0")
    k("s_cmp_lg_u32 s3, 0")
    with k.skippable("s_cbranch_scc1"):
        k(f"{MF} {R(240)}, {R(152)}, {R(216)}, 0\n{MF} {R(244)}, {R(156)}, {R(216)}, 0")
        for r in range(8): k(f"v_cndmask_b32 v{224+r}, v{224+r}, v{240+r}, s[4:5]")
    for r in range(4):
        for p in range(2): k(f"v_cvt_pk_bf16_f32 v{240+2*r+p}, v{224+8*p+r}, v{228+8*p+r}")
        k(f"ds_write_b64 v17, {R(240+2*r,2)} offset:{512*r}")
    k.wait_lds(); k("s_barrier")
    k(f"""s_mov_b64 exec, s[4:5]
    ds_read_b128 {R(128)}, v18
    ds_read_b128 {R(132)}, v18 offset:512
    s_mov_b64 exec, s[6:7]
    ds_read_b128 {R(136)}, v18 offset:1024
    ds_read_b128 {R(140)}, v18 offset:1536
    s_mov_b64 exec, -1""")
    for hv in range(2):
        for e in range(2):
            for t in range(2):
                n = 2*hv + e
                k(f"{MF} {R(192+8*e+4*t)}, {R(160+8*n+4*t)}, {R(128+4*n)}, {R(192+8*e+4*t)}")
    k("v_mov_b32 v248, 0\nv_mov_b32 v249, 0\nv_mov_b32 v250, 0\nv_mov_b32 v251, 0")
    for t in range(2):
        for r in range(4): k(f"v_cvt_pk_bf16_f32 v{240+4*t+r}, v{192+4*t+r}, v{200+4*t+r}")
    for n in range(4):
        k(f"""v_dot2c_f32_bf16 v248, v{240+n}, v255
        v_dot2c_f32_bf16 v249, v{240+n}, v{240+n}
        v_dot2c_f32_bf16 v250, v{244+n}, v255
        v_dot2c_f32_bf16 v251, v{244+n}, v{244+n}""")
    k("""v_add_f32 v248, v248, v250
    v_add_f32 v249, v249, v251
    v_permlane32_swap_b32 v248, v249
    v_add_f32 v248, v248, v249
    v_mov_b32 v249, v248
    v_permlane16_swap_b32 v248, v249
    v_add_f32 v248, v248, v249
    v_add_f32_dpp v248, v248, v248 row_ror:8 row_mask:0xf bank_mask:0xf
    ds_write_b32 v20, v248""")
    k.wait_lds(); k("s_barrier")
    k(f"""ds_read_b128 {R(224)}, v21
    ds_read_b128 {R(228)}, v21 offset:16
    v_add_f32 v224, v224, v225
    v_add_f32 v226, v226, v227
    v_add_f32 v228, v228, v229
    v_add_f32 v230, v230, v231
    v_add_f32 v224, v224, v226
    v_add_f32 v228, v228, v230
    v_mul_f32 v224, {f2h(1/512)}, v224
    v_mul_f32 v228, {f2h(1/512)}, v228
    v_fma_f32 v228, -v224, v224, v228
    v_max_f32 v228, 0, v228
    v_add_f32 v225, {f2h(1e-5)}, v228
    v_rsq_f32 v228, v225
    v_mul_f32 v229, -v224, v228""")
    for n in range(8): k(f"v_pk_fma_f32 {R(192+2*n,2)}, {R(192+2*n,2)}, v[228:229], v[228:229] op_sel:[0,0,1] op_sel_hi:[1,0,1]")
    for t in range(2):
        for r in range(4): k(f"v_cvt_pk_bf16_f32 v{216+4*t+r}, v{192+4*t+r}, v{200+4*t+r}")
    k("v_mul_f32 v225, v225, v228")
    k.dual("s70", [f"buffer_store_dwordx4 {R(216+4*t)}, v19, s[28:31], s58 offen offset:{1024*t}" for t in range(2)]
           + ["buffer_store_dwordx2 v[224:225], v23, s[28:31], s59 offen offset:768"], "sc1", tag="x3")
    stamp()
    srd(k, 36, 14, 2752)
    srd(k, 40, 18, 1024)
    k(f"""v_cmp_eq_u32 vcc, 0, v0
    v_mov_b32 v3, {OOB}
    v_mov_b32 v4, s72
    v_cndmask_b32 v3, v3, 0, vcc
    s_lshl_b32 s12, s24, 4
    s_lshl_b32 s13, s3, 2
    s_add_u32 s12, s12, s13
    s_add_u32 s12, s12, s65
    v_and_b32 v5, 31, v0
    v_lshlrev_b32 v5, 2, v5""")
    w1tr(1, 24)
    k.wait_tag("x3")
    k.dual("s70", ["buffer_store_dword v4, v3, s[28:31], s12 offen offset:128"], "sc1")
    f3 = "buffer_load_dword v6, v5, s[28:31], s65 offen offset:128 sc1"
    k(f3)
    k(f"""s_lshr_b32 s14, s3, 1
    s_mul_i32 s14, s14, 3
    s_mul_i32 s15, s24, 6
    s_add_u32 s14, s14, s15
    s_and_b32 s15, s3, 1
    s_lshl_b32 s16, s15, 1
    s_add_u32 s16, s16, s14
    s_add_u32 s14, s14, 1
    v_lshlrev_b32 v7, 3, v9
    s_lshl_b32 s17, s16, 6
    s_lshl_b32 s18, s14, 6
    s_lshl_b32 s19, s15, 5
    s_add_u32 s18, s18, s19
    buffer_load_dwordx2 v[80:81], v7, s[36:39], s17 offen
    buffer_load_dwordx2 v[82:83], v7, s[36:39], s17 offen offset:32
    buffer_load_dwordx2 v[84:85], v7, s[36:39], s18 offen
    v_lshlrev_b32 v7, 3, v8
    s_lshl_b32 s17, s24, 7
    buffer_load_dwordx2 v[86:87], v7, s[40:43], s17 offen
    s_add_u32 s19, s62, 65536
    s_lshl_b32 s56, s16, 10
    s_add_u32 s56, s56, s19
    s_cmp_ge_u32 s16, 43
    s_cselect_b32 s56, {OOB}, s56
    s_lshl_b32 s57, s14, 10
    s_add_u32 s57, s57, s19
    s_lshl_b32 s15, s15, 3
    s_add_u32 s57, s57, s15
    s_cmp_ge_u32 s14, 43
    s_cselect_b32 s57, {OOB}, s57
    s_mul_i32 s14, s3, 11
    s_lshl_b32 s15, s14, 10
    s_add_u32 s58, s19, s15
    s_cmp_eq_u32 s3, 3
    s_cselect_b32 s59, {OOB}, s58
    s_lshl_b32 s60, s14, 15
    s_add_u32 s60, s60, s17
    s_lshl_b32 s61, s3, 14
    s_add_u32 s15, s61, {LW2 - 32768}
    s_cmp_ge_u32 s3, 2
    s_cselect_b32 s61, s15, s61
    v_add_u32 v13, 4096, v12
    v_add_u32 v14, 8192, v12""")
    k(f"""s_lshl_b32 s14, s24, 4
    s_sub_u32 s14, s73, s14
    s_and_b32 s15, s3, 1
    s_lshl_b32 s15, s15, 3
    s_add_u32 s14, s14, s15
    s_lshr_b32 s15, s3, 1
    s_lshl_b32 s15, s15, 4
    s_add_u32 s14, s14, s15
    s_lshl_b32 s14, s14, 10
    s_add_u32 s63, s14, s17
    v_lshl_add_u32 v2, v9, 17, v7
    s_lshl_b32 s14, s3, 5
    s_add_u32 s64, s14, s65
    v_lshlrev_b32 v1, 3, v9""")
    k(f"""v_and_b32 v15, 3, v0
    v_lshlrev_b32 v15, 12, v15
    v_bfe_u32 v7, v0, 2, 2
    v_lshl_add_u32 v15, v7, 2, v15
    v_lshl_add_u32 v15, v9, 4, v15
    s_lshr_b32 s14, s24, 2
    s_lshl_b32 s14, s14, 10
    s_and_b32 s15, s24, 3
    s_lshl_b32 s15, s15, 8
    s_add_u32 s14, s14, s15
    s_lshl_b32 s15, s3, 6
    s_add_u32 s14, s14, s15
    s_add_u32 s14, s14, {LG}
    v_add_u32 v15, s14, v15""")
    k(f"""v_mul_u32_u24 v11, 1312, v7
    v_and_b32 v7, 3, v0
    v_mul_u32_u24 v7, 320, v7
    v_add_u32 v11, v11, v7
    v_lshl_add_u32 v11, v9, 4, v11
    s_lshl_b32 s14, s3, 6
    v_add_u32 v11, s14, v11
    v_mul_u32_u24 v10, 320, v9
    v_lshl_add_u32 v10, v8, 4, v10
    s_mul_i32 s14, s3, {RP}
    v_add_u32 v10, s14, v10""")
    k(f"""v_lshrrev_b32 v7, 3, v0
    v_lshrrev_b32 v68, 2, v7
    v_and_b32 v69, 3, v7
    v_lshl_add_u32 v68, v68, 4, v69
    v_lshlrev_b32 v68, 10, v68
    v_bfe_u32 v7, v7, 1, 1
    v_lshlrev_b32 v7, 5, v7
    v_and_b32 v69, 7, v0
    v_lshlrev_b32 v69, 4, v69
    v_xor_b32 v69, v69, v7
    v_add_u32 v68, v68, v69
    v_xor_b32 v69, 64, v68
    v_bfe_u32 v7, v0, 2, 2
    v_lshl_add_u32 v70, v9, 3, v7
    v_lshlrev_b32 v70, 7, v70
    v_lshrrev_b32 v7, 1, v7
    v_lshl_add_u32 v70, v7, 5, v70
    v_and_b32 v7, 1, v9
    v_lshl_add_u32 v70, v7, 6, v70
    v_and_b32 v7, 3, v0
    v_lshl_add_u32 v70, v7, 3, v70
    v_xor_b32 v71, 32, v70
    v_xor_b32 v72, 64, v70
    v_xor_b32 v73, 96, v70
    v_add_u32 v70, s61, v70
    v_add_u32 v71, s61, v71
    v_add_u32 v72, s61, v72
    v_add_u32 v73, s61, v73
    v_add_u32 v7, {LG}, v12
    s_lshl_b32 s13, s3, 12
    s_add_u32 s14, s13, s62
    s_add_u32 s15, s13, {LG}""")
    k.wait_lds(); k("s_barrier")
    poll(f3, "v_cmp_ne_u32 vcc, s72, v6", "pf3")
    stamp()
    for rt in range(4):
        k("s_mov_b32 m0, s15")
        for m in range(4): k(f"buffer_load_dwordx4 v12, s[28:31], s14 offen offset:{1024*m} sc1 lds", tag=f"dma{rt}")
        if rt < 3: k("s_add_u32 s14, s14, 16384\ns_add_u32 s15, s15, 16384")
    for rt in range(4): k(f"buffer_load_dwordx2 {R(136+2*rt,2)}, v1, s[28:31], s64 offen offset:{768+128*rt} sc1")
    for n in range(6): k(f"v_lshlrev_b32 v{16+2*n}, 16, v{80+n}\nv_and_b32 v{17+2*n}, 0xffff0000, v{80+n}")
    for n in range(2): k(f"v_lshlrev_b32 v{132+2*n}, 16, v{86+n}\nv_and_b32 v{133+2*n}, 0xffff0000, v{86+n}")
    def w2reg(s, sg, n=4, o=0): return R(192 + 16*s + 4*sg + o, n, "a") if s < 4 else R(144 + 16*(s-4) + 4*sg + o, n)
    def w2dma(s):
        with k.capture() as L:
            if s >= 4: k.mark("touch", regs=regs_of(w2reg(s-4, 3, 2, 2)))
            for m in range(4):
                k(f"s_add_u32 m0, s61, {(s&3)*4096 + m*1024}"); k.ins[-1].glue = True
                k("s_nop 0"); k.ins[-1].glue = True
                k(f"buffer_load_dwordx4 v{68+(m&1)}, s[48:51], s60 offen lds", tag=f"w2s{s}"); k.ins[-1].glue = True
                k(f"s_add_u32 s60, s60, {4096 if m < 3 else 32768 - 3*4096}")
        return L
    def w2tr(s):
        with k.capture() as L:
            k.wait_tag(f"w2s{s}")
            for sg in range(4):
                k(f"ds_read_b64_tr_b16 {w2reg(s,sg,2)}, v{70+sg} offset:{(s&3)*4096}\nds_read_b64_tr_b16 {w2reg(s,sg,2,2)}, v{70+sg} offset:{(s&3)*4096+512}")
        return L
    def hreg(rt, s): return R(88 + 4*s) if rt == 0 else R(44*(rt-1) + 4*s, 4, "a")
    def hload(rt, s): return f"buffer_load_dwordx4 {hreg(rt,s)}, v{12+(s>>2)}, s[28:31], s{59 if s == 10 else 58} offen offset:{(s&3)*1024} sc1"
    def hnext(): k(f"s_add_u32 s58, s58, {HT}\ns_add_u32 s59, s59, {HT}")
    def rd(rt, kap): return f"ds_read_b128 {R(28+4*(kap&3))}, v7 offset:{rt*16384+kap*1024}"
    def epi(rt):
        a = 44 + 12*(rt & 1)
        with k.capture() as L:
            for n in range(6):
                k(f"""v_max_f32 v74, 0, v{a+2*n}
                v_max_f32 v75, 0, v{a+2*n+1}
                v_mul_f32 v74, v74, v{a+2*n}
                v_mul_f32 v75, v75, v{a+2*n+1}
                v_cvt_pk_bf16_f32 v{80+n}, v74, v75""")
            k.dual("s70", ["buffer_store_dwordx4 v[80:83], v12, s[28:31], s56 offen", "buffer_store_dwordx2 v[84:85], v12, s[28:31], s57 offen"], "sc1", tag=f"h{rt}")
            if rt < 3: k(f"s_add_u32 s56, s56, {HT}\ns_add_u32 s57, s57, {HT}")
        return L
    def flag4(rt):
        k.wait_tag(f"h{rt}")
        k.dual("s70", [f"buffer_store_dword v4, v3, s[28:31], s12 offen offset:{256+128*rt}"], "sc1")
    def f4(rt): return f"buffer_load_dword v6, v5, s[28:31], s65 offen offset:{256+128*rt} sc1"
    FCHK = "v_cmp_ne_u32 vcc, s72, v6"
    for s_ in range(4): k.extend(w2dma(s_))
    k.wait_tag("dma0"); k("s_barrier")
    for kap in range(3): k(rd(0, kap))
    stamp()
    G1F, G1P = opt.get("g1_f", 7), opt.get("g1_p", 11)
    w2plan = {0: [0, 1, 2, 3], 1: [4, 5, 6], 2: [7, 8], 3: [9, 10]}
    for rt in range(4):
        a = 44 + 12*(rt & 1)
        with k.capture() as main:
            for kap in range(16):
                if kap == 12 and rt < 3: k.wait_tag(f"dma{rt+1}"); k("s_barrier")
                if rt >= 2 and kap == G1F: k(f4(rt-2))
                if rt >= 2 and kap == G1P:
                    poll(f4(rt-2), FCHK, f"pf4{rt-2}")
                    if rt == 3: hnext()
                for tau in range(3):
                    c_ = R(16+4*tau) if kap == 0 else R(a+4*tau)
                    k(f"{MF} {R(a+4*tau)}, {R((tau*16+kap)*4, f='a')}, {R(28+4*(kap&3))}, {c_}")
                if rt >= 2 and kap >= G1P:
                    for s in range(3*(kap-G1P), min(11, 3*(kap-G1P)+3)): k(hload(rt-2, s))
                if kap + 3 < 16: k(rd(rt, kap+3))
                elif rt < 3: k(rd(rt+1, kap+3-16))
        fill = epi(rt-1) if rt else []
        for s in w2plan[rt]:
            fill = fill + w2tr(s) + (w2dma(s+3) if 4 <= s + 3 <= 10 else [])
        k.extend(interleave(main, fill, every=1, per=2, start=2, only="mfma"))
        if rt: flag4(rt-1)
    stamp()
    def red_a(rt):
        a = 16 + 16*(rt & 1)
        for sg in range(4): k(f"ds_write_b128 v10, {R(a+4*sg)} offset:{LRD[rt&1] % 65536 + 1312*sg}" if LRD[rt&1] < 65536 else f"ds_write_b128 v76, {R(a+4*sg)} offset:{1312*sg}")
    def red_b(rt):
        k.wait_lds(); k("s_barrier")
        for src in range(4): k(f"ds_read_b128 {R(48+4*src)}, {'v11' if rt % 2 == 0 else 'v77'} offset:{RP*src}")
        r15 = "v15" if rt < 2 else "v78"
        k(f"ds_read_b32 v66, {r15} offset:{(rt&1)*16384}\nds_read_b32 v67, {r15} offset:{(rt&1)*16384+2048}")
        k(f"""v_add_f32 v48, v48, v52
        v_add_f32 v49, v49, v53
        v_add_f32 v50, v50, v54
        v_add_f32 v51, v51, v55
        v_add_f32 v56, v56, v60
        v_add_f32 v57, v57, v61
        v_add_f32 v58, v58, v62
        v_add_f32 v59, v59, v63
        v_lshlrev_b32 v52, 16, v66
        v_and_b32 v53, 0xffff0000, v66
        v_lshlrev_b32 v54, 16, v67
        v_and_b32 v55, 0xffff0000, v67""")
        for r in range(4): k(f"v_fma_f32 v{52+r}, v{52+r}, v{137+2*rt}, v{136+2*rt}")
        for r in range(4): k(f"v_add_f32 v{48+r}, v{48+r}, v{132+r}")
        for r in range(4): k(f"v_add_f32 v{52+r}, v{52+r}, v{56+r}")
        for r in range(4): k(f"v_add_f32 v{48+r}, v{48+r}, v{52+r}")
        k("v_cvt_pk_bf16_f32 v64, v48, v49\nv_cvt_pk_bf16_f32 v65, v50, v51")
        k(f"buffer_store_dwordx2 v[64:65], v2, s[52:55], s63 offen{' sc1' if opt.get('out_sc1', 1) else ''}")
        if rt < 3: k("s_add_u32 s63, s63, 32768")
    k(f"v_add_u32 v76, {LRD[1]}, v10\nv_add_u32 v77, {LRD[1]}, v11\nv_add_u32 v78, 32768, v15")
    for rt in range(4):
        a = 16 + 16*(rt & 1)
        with k.capture() as main:
            for s in range(11):
                if rt < 2 and s == opt.get("g2_f", 4): k(f4(rt+2))
                if rt < 2 and s == opt.get("g2_p", 7): poll(f4(rt+2), FCHK, f"pf4{rt+2}"); hnext()
                for sg in range(4):
                    k(f"{MF} {R(a+4*sg)}, {w2reg(s, sg)}, {hreg(rt, s)}, {'0' if s == 0 else R(a+4*sg)}")
                if rt < 2 and s >= opt.get("g2_p", 7):
                    n0 = (s - opt.get("g2_p", 7))*3
                    for s2 in range(n0, min(11, n0+3)): k(hload(rt+2, s2))
        with k.capture() as fill:
            if rt == 0: k.extend(epi(3))
            else: red_a(rt-1); red_b(rt-1)
        k.extend(interleave(main, fill, every=1, per=2, start=2, only="mfma"))
        if rt == 0: flag4(3)
    red_a(3); red_b(3)
    k(f"s_or_b32 s12, s22, s3\ns_cmp_eq_u32 s12, 0\ns_cselect_b32 s12, {WS_EP}, {OOB}")
    k("buffer_store_dword v4, v3, s[28:31], s12 offen")
    if diag:
        k.wait_vm_all(); stamp()
        k(f"""s_memrealtime s[14:15]
        s_waitcnt lgkmcnt(0)
        s_lshl_b32 s12, s2, 9
        s_lshl_b32 s13, s3, 7
        s_add_u32 s12, s12, s13
        s_add_u32 s12, s12, {WS_DBG}""")
        for n in range(nst[0]): k(f"v_mov_b32 v4, s{74+2*n}\nbuffer_store_dword v4, v3, s[28:31], s12 offen offset:{4*n}")
        k("v_mov_b32 v4, s100\nbuffer_store_dword v4, v3, s[28:31], s12 offen offset:120")
        k("v_mov_b32 v4, s14\nbuffer_store_dword v4, v3, s[28:31], s12 offen offset:124")
        k(f"""s_load_dwordx2 s[16:17], s[0:1], 72
        s_waitcnt lgkmcnt(0)
        s_mov_b32 s18, 64
        s_mov_b32 s19, 0x20000
        s_lshl_b32 s12, s2, 2
        s_add_u32 s12, s12, s3
        s_cmp_eq_u32 s12, {37*4}
        s_cselect_b32 s12, 0, {OOB}""")
        for n in range(1, nst[0]): k(f"s_sub_u32 s13, s{74+2*n}, s74\nv_mov_b32 v4, s13\nbuffer_store_dword v4, v3, s[16:19], s12 offen offset:{4*(n-1)}")
        k("s_sub_u32 s13, s14, s100\nv_mov_b32 v4, s13\nbuffer_store_dword v4, v3, s[16:19], s12 offen offset:60")
    if opt.get("probe") is not None:
        k.wait_vm_all(); stamp()
        k(f"s_waitcnt lgkmcnt(0)\ns_sub_u32 s98, s98, s100\ns_add_u32 s98, s98, {opt['pad']}")
        k.label("L_pad")
        k("s_memrealtime s[96:97]\ns_waitcnt lgkmcnt(0)\ns_sub_u32 s96, s96, s100\ns_cmp_lt_u32 s96, s98\ns_cbranch_scc1 L_pad")
    k.label("L_end")
    k("s_endpgm")
    for name, loads, check, br in slow:
        k.mark("reset")
        k.label(f"{name}_retry")
        k("s_mov_b32 s69, 0")
        k.label(f"{name}_loop")
        k(f"s_add_u32 s69, s69, 1\ns_cmp_gt_u32 s69, 4000\ns_cbranch_scc1 {name}_out")
        k(loads); k("s_waitcnt vmcnt(0)"); k(check)
        k(f"{br} {name}_loop")
        k.label(f"{name}_out")
        k(f"s_waitcnt vmcnt(0)\ns_nop 7\ns_branch {name}_ok")
    return k

HEADER = """; Fused kernel: preLN -> 2-D spectral filter (MFMA FFTs) -> residual -> preLN -> squared-ReLU MLP -> residual.
"""
def build_all(diag=False, opt=None):
    k = gen(diag, opt); t = k.text()
    nbytes = (sum(0 if i.raw else 8 for i in k.ins) + 127) & ~127
    k = gen(diag, opt, nbytes); t = k.text()
    lst = (opt or {}).get("aslist")
    launch = f"; @launch kernel={NAME} grid=(256,1,1) block=(256,1,1) lds={LDS_BYTES}" if lst else f"; @launch grid=(256,1,1) block=(256,1,1) lds={LDS_BYTES}"
    return "\n".join([HEADER + launch, '.amdgcn_target "amdgcn-amd-amdhsa--gfx950"', t, ".fill 4096, 4, 0xbf800000",
                      '.section .rodata,"a"', kd(NAME, 512, 256, 102)]) + "\n"

if __name__ == "__main__":
    diag = "diag" in sys.argv
    opt = json.loads(sys.argv[-1]) if sys.argv[-1].startswith("{") else {}
    sys.stdout.write(build_all(diag, opt))
```

```python
import sys, json
from asmgen import *
NAME = "sequential_preLN__spectral_gfnet__dense_activation_squared_relu__prompt_kernel"
MB = 1 << 20; KB = 1024
WS_EP, WS_FL, WS_WF, WS_WB, WS_X, WS_ALT, WS_DBG = 0, 4096, 128*KB, 192*KB, 1*MB, 12*MB, 24*MB
W_BYTES = 1376*KB
OOB = 0x7ff00000
GS = 262144
HT = 43*1024
LX, XP = 0, 1040
LE0 = 8320; LRS = LE0 + 16*528
LE1 = 17024
LST = 25216
LSP = 25472
LG = 41856
KP = 13504
LW2 = LG + 65536
RP = 5248
LRD = (0, LW2)
LDS_BYTES = LG + 8*KP
MF = "v_mfma_f32_16x16x32_bf16"; MF16 = "v_mfma_f32_16x16x16_bf16"
def R(b, n=4, f="v"): return f"{f}[{b}:{b+n-1}]"

def srd(k, Rr, lo, size, add=0):
    if add: k(f"s_add_u32 s{Rr}, s{lo}, {add}\ns_addc_u32 s{Rr+1}, s{lo+1}, 0")
    else: k(f"s_mov_b32 s{Rr}, s{lo}\ns_mov_b32 s{Rr+1}, s{lo+1}")
    k(f"s_mov_b32 s{Rr+2}, {size}\ns_mov_b32 s{Rr+3}, 0x20000")

def gen(diag=False, opt=None, code_bytes=32768):
    opt = opt or {}
    k = Kernel(NAME)
    slow = []; nst = [0]
    ALT = (WS_ALT - WS_X) if opt.get("no_overlay") else 0
    cnt = [0]
    def stamp():
        if opt.get("probe") is not None:
            if cnt[0] == 0: k("s_memrealtime s[100:101]"); k.ins[-1].kind = "salu"
            if cnt[0] == opt["probe"]: k("s_memrealtime s[98:99]"); k.ins[-1].kind = "salu"
            cnt[0] += 1
        if diag and nst[0] < 13:
            k(f"s_memtime s[{74+2*nst[0]}:{75+2*nst[0]}]"); k.ins[-1].kind = "salu"; nst[0] += 1
    def poll(loads, check, name, br="s_cbranch_vccnz"):
        k(check); k(f"{br} {name}_retry"); k.label(f"{name}_ok")
        slow.append((name, loads, check, br))
    def tagcheck(regs):
        return "\n".join(f"v_cmpx_eq_u32 vcc, s72, v{r}" for r in regs) + "\ns_cmp_eq_u64 exec, -1\ns_mov_b64 exec, -1"
    k("s_cmp_ge_u32 s2, 256\ns_cbranch_scc1 L_end")
    stamp()
    if diag: k("s_memrealtime s[100:101]"); k.ins[-1].kind = "salu"
    k("""s_load_dwordx2 s[20:21], s[0:1], 80
    s_load_dwordx4 s[4:7], s[0:1], 0
    s_load_dwordx2 s[8:9], s[0:1], 16
    s_load_dwordx8 s[12:19], s[0:1], 32
    s_load_dwordx2 s[10:11], s[0:1], 64
""")
    k("s_getpc_b64 s[62:63]")
    nl = (code_bytes + 127)//128; per = (nl + 31)//32
    k(f"""s_lshr_b32 s26, s2, 3
    s_mul_i32 s64, s26, {per*128}
    v_subrev_u32 v6, {opt.get("pf_head", 48)}, v0
    v_lshlrev_b32 v5, 7, v0
    v_min_u32 v4, {per-1}, v6
    v_lshlrev_b32 v4, 7, v4
    v_add_u32 v4, s64, v4
    v_cmp_gt_i32 vcc, 0, v6
    v_min_u32 v4, {code_bytes - 1024}, v4
    v_cndmask_b32 v4, v4, v5, vcc
    v_cmp_gt_u32 vcc, 64, v0
    s_and_saveexec_b64 s[66:67], vcc
    s_cbranch_execz L_nopf
    global_load_dword v152, v4, s[62:63]""")
    k.label("L_nopf")
    k("s_mov_b64 exec, s[66:67]")
    k("""    v_lshrrev_b32 v2, 6, v0
    v_mov_b32 v1, v0
    v_and_b32 v0, 63, v0
    v_readfirstlane_b32 s3, v2
    s_getreg_b32 s71, hwreg(HW_REG_XCC_ID)
    s_and_b32 s25, s2, 7
    s_bfe_u32 s24, s2, 0x30003
    s_lshr_b32 s26, s2, 3
    s_lshr_b32 s27, s2, 6
    s_lshl_b32 s23, s25, 2
    s_add_u32 s23, s23, s27
    s_lshl_b32 s22, s23, 3
    s_add_u32 s22, s22, s24""")
    k(f"""s_and_b32 s56, s23, 3
    s_lshl_b32 s56, s56, 9
    s_lshl_b32 s57, s24, 4
    s_add_u32 s56, s56, s57
    s_lshr_b32 s57, s23, 3
    s_lshl_b32 s57, s57, 1
    s_add_u32 s56, s56, s57
    s_bfe_u32 s57, s23, 0x10002
    s_add_u32 s73, s56, s57
    s_and_b32 s57, s3, 1
    s_lshl_b32 s57, s57, 8
    s_add_u32 s56, s73, s57
    s_lshr_b32 s57, s3, 1
    s_lshl_b32 s57, s57, 3
    s_add_u32 s56, s56, s57
    s_lshl_b32 s56, s56, 10
    s_add_u32 s57, s56, 131072
    s_mul_i32 s58, s3, {2*XP}
    v_lshlrev_b32 v12, 4, v0
    v_and_b32 v8, 15, v0
    v_lshrrev_b32 v9, 4, v0
    v_and_b32 v10, 7, v0
    v_bfe_u32 v11, v0, 3, 1""")
    k(f"""s_and_b32 s60, s22, 15
    s_lshr_b32 s61, s22, 6
    s_lshl_b32 s61, s61, 6
    s_add_u32 s60, s60, s61
    s_bfe_u32 s61, s22, 0x20004
    s_lshl_b32 s61, s61, 9
    s_add_u32 s60, s60, s61
    s_mul_i32 s61, s60, 514
    s_lshl_b32 s59, s3, 7
    s_add_u32 s61, s61, s59
    v_mul_u32_u24 v3, {16*514}, v9
    v_mul_u32_u24 v2, {256*514}, v11
    v_add_u32 v3, v3, v2
    v_lshl_add_u32 v3, v10, 4, v3
    s_lshl_b32 s59, s3, 11
    s_add_u32 s59, s59, {LSP}
    s_waitcnt lgkmcnt(0)
    s_load_dword s72, s[20:21], {WS_EP}""")
    k.ins[-1].kind = "salu"
    srd(k, 32, 4, 2*MB)
    k("s_mov_b32 m0, s58")
    k("buffer_load_dwordx4 v12, s[32:35], s56 offen lds", tag="x")
    k(f"s_add_u32 m0, s58, {XP}")
    k("buffer_load_dwordx4 v12, s[32:35], s57 offen lds", tag="x")
    srd(k, 36, 6, 2048*514)
    srd(k, 40, 8, 2048*514)
    k("s_mov_b32 m0, s59")
    k("buffer_load_dwordx4 v3, s[36:39], s61 offen lds", tag="W")
    k(f"s_add_u32 m0, s59, 1024")
    k("buffer_load_dwordx4 v3, s[40:43], s61 offen lds", tag="W")
    srd(k, 28, 20, 32*MB)
    k(f"""v_mov_b32 v196, -1
    v_mov_b32 v197, -1
    v_mov_b32 v198, -1
    v_mov_b32 v199, -1
    v_lshlrev_b32 v2, 4, v1
    s_lshl_b32 s64, s23, 18
    s_lshl_b32 s68, s24, 13
    s_add_u32 s64, s64, s68
    s_add_u32 s64, s64, {WS_X + 131072}
    s_add_u32 s68, s64, 4096""")
    k("buffer_store_dwordx4 v[196:199], v2, s[28:31], s64 offen sc1\nbuffer_store_dwordx4 v[196:199], v2, s[28:31], s68 offen sc1", tag="clr")
    srd(k, 44, 12, W_BYTES)
    srd(k, 48, 16, W_BYTES)
    srd(k, 52, 10, 2*MB)
    def touch(name, dst):
        with k.capture() as L:
            if name[:2] == "w1":
                nl = 43
                k(f"s_mul_i32 s64, s26, {16*2752}\ns_mul_i32 s68, s3, {43*128}\ns_add_u32 s64, s64, s68")
                if name == "w1b": k(f"s_add_u32 s64, s64, {8*2752}")
            else:
                nl = 48 if name == "w2a" else 40
                k(f"""s_lshr_b32 s64, s26, 3
                s_mul_i32 s64, s64, {352*1024}
                s_and_b32 s68, s26, 7
                s_lshl_b32 s68, s68, 2
                s_add_u32 s68, s68, s3
                s_mul_i32 s68, s68, {nl*128}
                s_add_u32 s64, s64, s68""")
                if name == "w2b": k(f"s_add_u32 s64, s64, {192*1024}")
            sr = 44 if name[:2] == "w1" else 48
            k(f"""v_min_u32 v6, {nl-1}, v0
            v_lshlrev_b32 v6, 7, v6
            buffer_load_dword v{dst}, v6, s[{sr}:{sr+3}], s64 offen""")
        return [] if name in opt.get("skip", []) else L
    with k.capture() as early:
        k(f"""v_bfe_u32 v4, v0, 3, 2
        v_lshlrev_b32 v4, 4, v4
        v_bfe_u32 v5, v0, 2, 1
        v_lshl_add_u32 v4, v5, 8, v4
        v_add_u32 v4, s60, v4
        v_sub_u32 v5, 2048, v4
        v_and_b32 v5, 2047, v5
        v_and_b32 v6, 1, v0
        v_mul_u32_u24 v5, v5, v6
        v_xor_b32 v6, 1, v6
        v_mad_u32_u24 v4, v4, v6, v5
        v_mul_u32_u24 v4, 514, v4
        v_bfe_u32 v5, v0, 1, 1
        v_lshl_add_u32 v4, v5, 9, v4
        v_lshrrev_b32 v5, 5, v1
        v_min_u32 v5, 1, v5
        v_lshl_add_u32 v4, v5, 30, v4
        buffer_load_ushort v144, v4, s[36:39], 0 offen
        buffer_load_ushort v145, v4, s[40:43], 0 offen""")
        k(f"""s_lshl_b32 s65, s23, 11
        s_add_u32 s65, s65, {WS_FL}
        v_min_u32 v6, 9, v1
        v_lshlrev_b32 v6, 7, v6
        buffer_load_dword v153, v6, s[28:31], s65 offen""")
    with k.capture() as cA:
        k(f"""v_cvt_f32_u32 v24, v8
        v_lshlrev_b32 v25, 2, v9
        v_cvt_f32_u32 v25, v25
        v_mul_f32 v26, {f2h(1/32)}, v24
        v_cmp_eq_u32 vcc, 0, v8
        v_mov_b32 v27, 0.5
        v_mov_b32 v28, {f2h(0.25)}
        v_mov_b32 v87, {f2h(1/16)}
        v_cndmask_b32 v27, v26, v27, vcc
        v_cndmask_b32 v28, v28, 0, vcc
        v_cndmask_b32 v87, 0, v87, vcc""")
        for jp in range(4):
            for q in range(2):
                j = 2*jp + q
                k(f"""v_add_f32 v29, {f2h(float((j & 3) + 16*(j >> 2)))}, v25
                v_mul_f32 v{88+q}, v29, v26
                v_fma_f32 v{90+q}, v29, v27, v28
                v_cos_f32 v{88+q}, v{88+q}
                v_cos_f32 v{90+q}, v{90+q}""")
            k(f"v_cvt_pk_bf16_f32 v{16+jp}, v88, v89\nv_cvt_pk_bf16_f32 v{20+jp}, v90, v91")
        k(f"""s_lshl_b32 s66, s3, 2
        v_cvt_f32_u32 v26, s66
        v_fmac_f32 v26, {f2h(32.0)}, v24
        v_mul_f32 v26, {f2h(1/512)}, v26
        v_cmp_lt_u32 vcc, 7, v8
        v_mov_b32 v27, 0x80008000
        v_cndmask_b32 v27, 0, v27, vcc""")
        for n in range(4):
            k(f"""v_add_f32 v28, {f2h(n/512)}, v26
            v_mul_f32 v88, v25, v28
            v_add_f32 v90, v88, v28
            v_add_f32 v92, v90, v28
            v_add_f32 v94, v92, v28""")
            for r in range(4):
                k(f"v_sin_f32 v{89+2*r}, v{88+2*r}\nv_cos_f32 v{88+2*r}, v{88+2*r}")
            for r in range(4):
                k(f"""v_cvt_pk_bf16_f32 v{32+8*n+r}, v{88+2*r}, v{89+2*r}
                v_cvt_pk_bf16_f32 v{36+8*n+r}, -v{89+2*r}, v{88+2*r}
                v_xor_b32 v{36+8*n+r}, v27, v{36+8*n+r}""")
        for r in range(64, 80): k(f"v_mov_b32 v{r}, 0")
        k(f"""v_lshlrev_b32 v80, 3, v0
        v_add_u32 v80, s58, v80
        v_mul_u32_u24 v81, 528, v8
        v_lshl_add_u32 v81, v9, 7, v81
        s_lshl_b32 s66, s3, 5
        s_add_u32 s66, s66, {LE0}
        v_add_u32 v81, s66, v81
        v_lshlrev_b32 v82, 4, v10
        v_lshl_add_u32 v82, v9, 7, v82
        s_mul_i32 s66, s3, {4*528}
        s_add_u32 s66, s66, {LE0}
        v_add_u32 v82, s66, v82
        v_and_b32 v83, 1, v9
        v_lshlrev_b32 v84, 2, v83
        s_lshl_b32 s66, s3, 3
        s_add_u32 s66, s66, {LRS}
        v_add_u32 v84, s66, v84
        v_lshlrev_b32 v83, 2, v10
        v_add_u32 v83, {LRS}, v83
        v_lshlrev_b32 v204, 2, v9
        v_sub_u32 v205, 15, v204
        v_min_u32 v204, v204, v205
        v_lshrrev_b32 v205, 1, v9
        v_lshl_add_u32 v204, v204, 1, v205
        v_lshlrev_b32 v204, 19, v204
        v_lshl_add_u32 v204, v8, 3, v204
        v_lshlrev_b32 v205, 21, v205
        v_sub_u32 v85, {4*GS}, v205
        v_add_u32 v205, v204, v85
        v_add_u32 v206, v205, v85
        v_add_u32 v207, v206, v85
        s_lshr_b32 s66, s3, 1
        s_lshl_b32 s66, s66, 18
        s_and_b32 s67, s3, 1
        s_lshl_b32 s67, s67, 16
        s_add_u32 s66, s66, s67
        s_lshl_b32 s67, s22, 7
        s_add_u32 s66, s66, s67
        s_add_u32 s66, s66, {WS_X}
        s_add_u32 s67, s66, 32768
        v_bfe_u32 v200, v0, 2, 2
        v_lshlrev_b32 v200, 7, v200
        v_lshl_add_u32 v200, v9, 5, v200
        v_and_b32 v201, 3, v0
        v_lshl_add_u32 v200, v201, 3, v200
        v_add_u32 v200, s59, v200
        v_lshlrev_b32 v201, 4, v201
        v_bfe_u32 v202, v1, 2, 1
        v_lshl_add_u32 v201, v202, 15, v201
        v_lshrrev_b32 v202, 3, v1
        v_lshl_add_u32 v201, v202, 18, v201
        s_lshl_b32 s59, s22, 7
        s_add_u32 s59, s59, {WS_X + 196608}
        v_mov_b32 v86, 0x3f803f80
        s_mov_b32 s4, 0x00ff00ff
        s_mov_b32 s5, 0x00ff00ff
        s_not_b64 s[6:7], s[4:5]""")
    k.extend(interleave(cA, early + touch("w1a", 154), every=opt.get("early_every", 2)))
    k("s_cmp_lg_u32 s3, 0")
    with k.skippable("s_cbranch_scc1"):
        k(f"""v_cmp_lt_u32 vcc, 7, v8
        v_mul_f32 v26, {f2h(32/512)}, v24
        v_sub_f32 v28, {f2h(496/512)}, v26
        v_cndmask_b32 v26, v26, v28, vcc
        v_mov_b32 v27, 0xffff
        v_mov_b32 v28, 0xffff0000
        v_cndmask_b32 v27, v27, v28, vcc
        v_cmp_eq_u32 vcc, 0, v8""")
        for r in range(4):
            k(f"""v_add_f32 v29, {f2h(float(r))}, v25
            v_mul_f32 v88, v29, v26
            v_sin_f32 v89, v88
            v_cos_f32 v88, v88
            v_mov_b32 v28, {'1.0' if r & 1 else '-1.0'}
            v_cndmask_b32 v89, v89, v28, vcc
            v_cvt_pk_bf16_f32 v{32+r}, v88, v88
            v_cvt_pk_bf16_f32 v{36+r}, -v89, -v89
            v_and_b32 v{32+r}, v27, v{32+r}
            v_and_b32 v{36+r}, v27, v{36+r}""")
    k(f"""s_waitcnt lgkmcnt(0)
    s_add_u32 s72, s72, 0x9e3779b9
    s_and_b32 s71, s71, 15
    s_add_u32 s71, s71, s72
    v_cmp_eq_u32 vcc, 0, v1
    v_mov_b32 v6, {OOB}
    v_mov_b32 v2, s71
    v_cndmask_b32 v6, v6, 0, vcc
    s_lshl_b32 s64, s24, 2
    s_add_u32 s64, s64, s65
    buffer_store_dword v2, v6, s[28:31], s64 offen sc1""")
    for r in range(113, 128, 2): k(f"v_mov_b32 v{r}, s72")
    stamp()
    k.wait_tag("W")
    k(f"""ds_read_b64_tr_b16 v[88:89], v80
    ds_read_b64_tr_b16 v[90:91], v80 offset:512
    ds_read_b64_tr_b16 v[92:93], v80 offset:{XP}
    ds_read_b64_tr_b16 v[94:95], v80 offset:{XP+512}
    ds_read_b64_tr_b16 v[192:193], v200
    ds_read_b64_tr_b16 v[194:195], v200 offset:512
    ds_read_b64_tr_b16 v[196:197], v200 offset:1024
    ds_read_b64_tr_b16 v[198:199], v200 offset:1536
    v_mov_b32 v24, 0
    v_mov_b32 v25, 0
    v_mov_b32 v26, 0
    v_mov_b32 v27, 0
    {MF} v[96:99], v[88:91], v[16:19], 0
    {MF} v[100:103], v[88:91], v[20:23], 0""")
    for j in range(4): k(f"v_dot2c_f32_bf16 v24, v{88+j}, v86\nv_dot2c_f32_bf16 v25, v{88+j}, v{88+j}")
    k(f"{MF} v[104:107], v[92:95], v[16:19], 0\n{MF} v[108:111], v[92:95], v[20:23], 0")
    for j in range(4): k(f"v_dot2c_f32_bf16 v26, v{92+j}, v86\nv_dot2c_f32_bf16 v27, v{92+j}, v{92+j}")
    k("buffer_store_dwordx4 v[192:195], v201, s[28:31], s59 offen sc1", tag="wt")
    k("buffer_store_dwordx4 v[196:199], v201, s[28:31], s59 offen offset:64 sc1", tag="wt")
    k("""v_permlane32_swap_b32 v24, v25
    v_add_f32 v24, v24, v25
    v_permlane32_swap_b32 v26, v27
    v_add_f32 v26, v26, v27
    v_permlane16_swap_b32 v24, v26
    v_add_f32 v24, v24, v26""")
    for sh in (8, 4, 2, 1): k(f"v_add_f32_dpp v24, v24, v24 row_ror:{sh} row_mask:0xf bank_mask:0xf")
    k("v_readlane_b32 s56, v24, 0\nv_readlane_b32 s57, v24, 16\nv_mov_b32 v25, v24")
    for r in range(4): k(f"v_fma_f32 v{96+r}, -v87, s56, v{96+r}")
    k("v_permlane32_swap_b32 v24, v25")
    for r in range(4): k(f"v_cvt_pk_bf16_f32 v{88+r}, v{96+r}, v{100+r}")
    k("ds_write_b128 v81, v[88:91]")
    for r in range(4): k(f"v_fma_f32 v{104+r}, -v87, s57, v{104+r}")
    k(f"v_mul_f32 v24, {f2h(1/512)}, v24\nv_mul_f32 v25, {f2h(1/512)}, v25")
    for r in range(4): k(f"v_cvt_pk_bf16_f32 v{92+r}, v{104+r}, v{108+r}")
    k("ds_write_b128 v81, v[92:95] offset:16")
    k(f"""v_fma_f32 v25, -v24, v24, v25
    v_max_f32 v25, 0, v25
    v_add_f32 v25, {f2h(1e-5)}, v25
    v_rsq_f32 v25, v25
    ds_write_b32 v84, v25""")
    k.wait_tag("clr")
    k.wait_lds(); k("s_barrier")
    k(f"""s_mov_b64 exec, s[4:5]
    ds_read_b128 v[64:67], v82
    ds_read_b128 v[72:75], v82 offset:{2*528}
    s_mov_b64 exec, s[6:7]
    ds_read_b128 v[68:71], v82 offset:528
    ds_read_b128 v[76:79], v82 offset:{3*528}
    s_mov_b64 exec, -1
    ds_read_b32 v28, v83""")
    QP = "row_mask:0xf bank_mask:0xf"
    k(f"""v_lshlrev_b32 v144, 16, v144
    v_lshlrev_b32 v145, 16, v145
    v_mul_f32 v144, {f2h(0.25)}, v144
    v_mul_f32 v145, {f2h(0.25)}, v145
    v_add_f32_dpp v146, v144, v144 quad_perm:[1,0,3,2] {QP}
    v_subrev_f32_dpp v147, v145, v145 quad_perm:[1,0,3,2] {QP}
    v_add_f32_dpp v148, v146, v146 quad_perm:[2,3,0,1] {QP}
    v_add_f32_dpp v149, v147, v147 quad_perm:[2,3,0,1] {QP}
    v_subrev_f32_dpp v150, v146, v146 quad_perm:[2,3,0,1] {QP}
    v_subrev_f32_dpp v151, v147, v147 quad_perm:[2,3,0,1] {QP}
    v_cvt_pk_bf16_f32 v148, v148, v149
    v_cvt_pk_bf16_f32 v149, v150, v151
    v_and_b32 v6, 0xe3, v1
    v_min_u32 v6, 1, v6
    v_lshlrev_b32 v6, 30, v6
    v_lshl_add_u32 v6, v0, 1, v6
    s_lshl_b32 s64, s22, 6
    s_add_u32 s64, s64, {WS_WB}""")
    k("buffer_store_dwordx2 v[148:149], v6, s[28:31], s64 offen sc1", tag="wt")
    for h in range(2):
        for p in range(2):
            for part in range(2):
                d = 96 + 8*p + 4*part
                k(f"{MF} {R(d)}, {R(32+16*p+8*h+4*part)}, {R(64+8*p+4*h)}, {R(d) if h else 0}")
    for p in range(2):
        d = 96 + 8*p
        for q in range(4): k(f"v_pk_mul_f32 {R(d+2*q,2)}, {R(d+2*q,2)}, v[28:29] op_sel_hi:[1,0]")
        for r in range(4):
            k(f"v_cvt_pk_bf16_f32 v{112+8*p+2*r}, v{d+r}, v{d+4+r}")
            k(f"buffer_store_dwordx2 {R(112+8*p+2*r,2)}, v{204+r}, s[28:31], s{66+p} offen sc1")
    stamp()
    if not opt.get("w1b_late"): k.extend(touch("w1b", 155))
    k(f"""v_cmp_lt_u32 vcc, 25, v0
    v_mov_b32 v5, {2752 - 26*16}
    v_cndmask_b32 v5, 0, v5, vcc
    v_cmp_lt_u32 vcc, 51, v0
    v_mov_b32 v6, {16*2752 - 52*16}
    v_cndmask_b32 v5, v5, v6, vcc
    v_add_u32 v7, v5, v12
    v_subrev_u32 v5, 24, v0
    v_cmp_gt_u32 vcc, 2, v5
    v_mov_b32 v6, {OOB}
    v_cndmask_b32 v7, v7, v6, vcc
    v_subrev_u32 v5, 50, v0
    v_cmp_gt_u32 vcc, 2, v5
    v_cndmask_b32 v7, v7, v6, vcc""")
    def w1dma(batch):
        with k.capture() as L:
            k(f"""s_lshl_b32 s68, s3, 1
            s_add_u32 s68, s68, {8*batch}
            s_mul_i32 s68, s68, 2752
            s_mul_i32 s69, s24, 384
            s_add_u32 s68, s68, s69
            s_mul_i32 s69, s3, {2*KP}
            s_add_u32 s69, s69, {LG}""")
            for t in range(2):
                for n in range(16):
                    k(f"s_add_u32 m0, s69, {t*KP + n*832}"); k.ins[-1].glue = True
                    k(f"s_nop 0"); k.ins[-1].glue = True
                    k(f"buffer_load_dwordx4 v7, s[44:47], s68 offen lds", tag=f"w1b{batch}"); k.ins[-1].glue = True
                    k(f"s_add_u32 s68, s68, {16*2752}")
        return L[:7] if f"dma{batch}" in opt.get("skip", []) else L
    def w1tr(batch, a0):
        k(f"""v_bfe_u32 v{a0}, v0, 2, 2
        v_lshl_add_u32 v{a0}, v9, 3, v{a0}
        v_mul_u32_u24 v{a0}, 416, v{a0}
        v_and_b32 v{a0+1}, 3, v0
        v_lshl_add_u32 v{a0}, v{a0+1}, 3, v{a0}
        s_lshr_b32 s68, s3, 1
        s_mul_i32 s68, s68, 192
        s_and_b32 s69, s3, 1
        s_lshl_b32 s69, s69, 5
        s_add_u32 s68, s68, {LG}
        s_add_u32 s69, s69, s68
        s_add_u32 s69, s69, 64
        v_add_u32 v{a0+1}, s69, v{a0}
        s_and_b32 s69, s3, 1
        s_lshl_b32 s69, s69, 7
        s_add_u32 s69, s69, s68
        v_add_u32 v{a0}, s69, v{a0}
        v_add_u32 v{a0+2}, {4*KP}, v{a0}
        v_add_u32 v{a0+3}, {4*KP}, v{a0+1}""")
        for kl in range(8):
            kap = 8*batch + kl
            for tau in range(3):
                a = a0 + 2*(kl >> 2) + (1 if tau == 2 else 0)
                off = (kl & 3)*KP + (32 if tau == 1 else 0)
                d = (tau*16 + kap)*4
                k(f"ds_read_b64_tr_b16 {R(d,2,'a')}, v{a} offset:{off}\nds_read_b64_tr_b16 {R(d+2,2,'a')}, v{a} offset:{off+4*416}")
    with k.capture() as cB:
        k(f"""v_cvt_f32_u32 v156, v8
        v_lshlrev_b32 v157, 2, v9
        v_cvt_f32_u32 v157, v157
        s_lshl_b32 s56, s3, 1
        v_cvt_f32_u32 v158, s56""")
        def mats(base, inv, lane_is_k, N1, N):
            for e in range(2):
                if lane_is_k:
                    k(f"""v_mul_f32 v159, {f2h(1/N)}, v156
                    v_add_f32 v160, {f2h(float(e))}, v158
                    v_fmac_f32 v160, {f2h(float(N1))}, v157
                    v_mul_f32 v160, v160, v159
                    v_mul_f32 v159, {f2h(float(N1))}, v159""")
                else:
                    k(f"""v_add_f32 v159, {f2h(float(e))}, v158
                    v_fmac_f32 v159, {f2h(float(N1))}, v156
                    v_mul_f32 v159, {f2h(1/N)}, v159
                    v_mul_f32 v160, v157, v159""")
                k("v_add_f32 v162, v160, v159\nv_add_f32 v164, v162, v159\nv_add_f32 v166, v164, v159")
                for r in range(4): k(f"v_sin_f32 v{161+2*r}, v{160+2*r}\nv_cos_f32 v{160+2*r}, v{160+2*r}")
                for r in range(4):
                    d, co, si = base + 8*e + r, 160 + 2*r, 161 + 2*r
                    if inv: k(f"v_cvt_pk_bf16_f32 v{d}, v{co}, -v{si}\nv_cvt_pk_bf16_f32 v{d+4}, v{si}, v{co}")
                    else: k(f"v_cvt_pk_bf16_f32 v{d}, v{co}, v{si}\nv_cvt_pk_bf16_f32 v{d+4}, -v{si}, v{co}")
        mats(56, False, True, 128, 2048)
        k(f"""v_mul_f32 v159, {f2h(1/256)}, v156
        v_mul_f32 v120, v157, v159
        v_add_f32 v121, v120, v159
        v_add_f32 v122, v121, v159
        v_add_f32 v123, v122, v159""")
        for r in range(4): k(f"v_sin_f32 v{124+r}, v{120+r}\nv_cos_f32 v{120+r}, v{120+r}")
        mats(72, False, True, 8, 128)
        k(f"""v_lshrrev_b32 v159, 1, v8
        v_cvt_f32_u32 v159, v159
        v_mul_f32 v159, {f2h(1/8)}, v159
        v_and_b32 v160, 1, v8
        v_cvt_f32_u32 v160, v160
        v_mul_f32 v160, {f2h(0.25)}, v160
        v_mul_f32 v165, 0.5, v157""")
        for e in range(2):
            if e: k("v_add_f32 v165, 1.0, v165")
            k(f"""v_fma_f32 v161, v159, v165, v160
            v_fma_f32 v163, -v159, v165, v160
            v_sin_f32 v162, v161
            v_cos_f32 v161, v161
            v_sin_f32 v164, v163
            v_cos_f32 v163, v163
            v_cvt_pk_bf16_f32 v{128+e}, v161, v162
            v_mul_f32 v163, {f2h(2.0**-19)}, v163
            v_mul_f32 v164, {f2h(2.0**-19)}, v164
            v_cvt_pk_bf16_f32 v{130+e}, v163, v164""")
        mats(88, True, False, 8, 128)
        mats(104, True, False, 128, 2048)
        k(f"""v_lshlrev_b32 v168, 10, v9
        v_lshl_add_u32 v168, v8, 4, v168
        s_lshl_b32 s56, s3, 8
        v_add_u32 v168, s56, v168
        s_lshl_b32 s56, s3, 10
        v_add_u32 v169, s56, v12
        v_lshlrev_b32 v170, 18, v9
        v_lshl_add_u32 v170, v8, 4, v170
        v_lshrrev_b32 v171, 1, v8
        v_lshlrev_b32 v171, 7, v171
        v_lshl_add_u32 v171, v9, 10, v171
        v_and_b32 v172, 1, v8
        v_lshl_add_u32 v171, v172, 5, v171
        v_lshlrev_b32 v172, 7, v1
        v_lshlrev_b32 v173, 6, v1
        v_lshlrev_b32 v175, 6, v1
        s_lshl_b32 s56, s23, 18
        s_lshr_b32 s57, s24, 1
        s_lshl_b32 s57, s57, 15
        s_add_u32 s56, s56, s57
        s_and_b32 s57, s24, 1
        s_lshl_b32 s57, s57, 6
        s_add_u32 s56, s56, s57
        s_lshl_b32 s57, s3, 13
        s_add_u32 s56, s56, s57
        s_add_u32 s56, s56, {WS_X}
        s_add_u32 s57, s56, 4096
        s_and_b32 s60, s27, 1
        s_lshl_b32 s60, s60, 3
        s_add_u32 s60, s60, s24
        s_sub_u32 s58, 32, s60
        s_cmp_eq_u32 s60, 0
        s_cselect_b32 s58, 16, s58
        s_cmp_ge_u32 s27, 2
        s_cselect_b32 s58, s58, s60
        s_lshl_b32 s59, s25, 5
        s_add_u32 s59, s59, s58
        s_and_b32 s58, s59, 3
        s_lshl_b32 s58, s58, 4
        s_bfe_u32 s61, s59, 0x10002
        s_lshl_b32 s61, s61, 15
        s_add_u32 s58, s58, s61
        s_lshr_b32 s59, s59, 3
        s_lshl_b32 s59, s59, 18
        s_add_u32 s58, s58, s59
        s_add_u32 s58, s58, {WS_X + 196608}
        s_lshr_b32 s59, s25, 1
        s_lshl_b32 s59, s59, 14
        s_add_u32 s59, s59, {WS_WF}
        s_lshl_b32 s60, s60, 4
        s_sub_u32 s61, 15, s25
        s_cmp_ge_u32 s27, 2
        s_cselect_b32 s61, s61, s25
        s_add_u32 s60, s60, s61
        s_lshl_b32 s60, s60, 8
        s_lshl_b32 s61, s3, 21
        s_add_u32 s60, s60, s61
        s_add_u32 s60, s60, {WS_X + 131072}
        s_add_u32 s61, s60, {4*GS}""")
    for x_ in cB:
        if x_.op.startswith("s_cmp"): x_.glue = True
    nb = opt.get("cB_split", 150)
    d0 = w1dma(0)
    k.extend(interleave(cB[:nb], d0[:7+4*opt.get('d0_split', 14)], every=opt.get("x1_every", 9)))
    k(f"""v_cmp_gt_u32 vcc, 16, v0
    v_mov_b32 v5, {OOB}
    v_lshlrev_b32 v4, 2, v0
    v_mov_b32 v6, s72
    v_cndmask_b32 v5, v5, v4, vcc
    s_lshl_b32 s64, s3, 14
    s_lshl_b32 s66, s22, 6
    s_add_u32 s64, s64, s66
    s_add_u32 s64, s64, {WS_WF}""")
    if opt.get("st_wt"): stamp()
    k.wait_tag("wt")
    if opt.get("st_wt"): stamp()
    k("buffer_store_dword v6, v5, s[28:31], s64 offen sc1")
    if opt.get("w1b_late"): k.extend(touch("w1b", 155))
    k.extend(interleave(cB[nb:], d0[7+4*opt.get('d0_split', 14):], every=opt.get("x1_every", 9)))
    srd(k, 32, 20, 16384, WS_WB)
    k("s_cmp_eq_u32 s22, 0\ns_cselect_b32 s34, 16384, 0")
    stamp()
    zl = "\n".join(f"buffer_load_dwordx4 {R(176+8*e+4*q)}, v171, s[28:31], s{56+e} offen offset:{16*q} sc1" for e in range(2) for q in range(2))
    wfl = "buffer_load_dword v174, v173, s[28:31], s59 offen sc1"
    k(wfl)
    poll(wfl, "v_cmp_ne_u32 vcc, s72, v174", "pwf")
    if opt.get("st_wt"): stamp()
    k(zl)
    k("""buffer_load_dwordx4 v[24:27], v172, s[28:31], s58 offen sc1
    buffer_load_dwordx4 v[28:31], v172, s[28:31], s58 offen offset:64 sc1""")
    for q in range(4): k(f"buffer_load_dwordx4 {R(192+4*q)}, v175, s[32:35], 0 offen offset:{16*q} sc1")
    k.extend(touch("w2a", 33))
    poll(zl, tagcheck(range(177, 192, 2)), "pz", "s_cbranch_scc0")
    stamp()
    for e in range(2):
        for r in range(4): k(f"v_mov_b32 v{16+4*e+r}, v{176+8*e+2*r}")
    def twiddle(sign):
        for e in range(2):
            re, im = 132 + 8*e, 136 + 8*e
            for q in range(2):
                a, b = 156 + 4*e + 2*q, 148 + 4*e + 2*q
                n1_, n2_ = ("neg_lo:[0,1,0] neg_hi:[0,1,0]", "") if sign > 0 else ("", "neg_lo:[0,1,0] neg_hi:[0,1,0]")
                k(f"""v_pk_mul_f32 {R(a,2)}, {R(re+2*q,2)}, {R(120+2*q,2)}
                v_pk_mul_f32 {R(b,2)}, {R(im+2*q,2)}, {R(120+2*q,2)}
                v_pk_fma_f32 {R(a,2)}, {R(im+2*q,2)}, {R(124+2*q,2)}, {R(a,2)} {n1_}
                v_pk_fma_f32 {R(b,2)}, {R(re+2*q,2)}, {R(124+2*q,2)}, {R(b,2)} {n2_}""")
            for r in range(4): k(f"v_cvt_pk_bf16_f32 v{16+4*e+r}, v{156+4*e+r}, v{148+4*e+r}")
    def stage(cbase, data_is_A):
        for e in range(2):
            for part in range(2):
                c_ = R(cbase + 8*e + 4*part); d_ = R(16 + 4*e)
                k(f"{MF} {R(132+8*e+4*part)}, {d_ if data_is_A else c_}, {c_ if data_is_A else d_}, 0")
    stage(56, True)
    twiddle(-1)
    stage(72, False)
    for e in range(2):
        for r in range(4): k(f"v_cvt_pk_bf16_f32 v{16+2*r+e}, v{132+8*e+r}, v{136+8*e+r}")
    k(f"ds_write_b128 v168, v[16:19] offset:{LE1}\nds_write_b128 v168, v[20:23] offset:{LE1+4096}")
    k.wait_lds(); k("s_barrier")
    k(f"ds_read_b128 v[16:19], v169 offset:{LE1}\nds_read_b128 v[20:23], v169 offset:{LE1+4096}")
    for n in range(8):
        for p_ in range(2):
            k(f"v_lshlrev_b32 v{40+2*n+p_}, 16, v{24+4*p_+(n>>1)}" if n % 2 == 0 else f"v_and_b32 v{40+2*n+p_}, 0xffff0000, v{24+4*p_+(n>>1)}")
    for r in range(4): k(f"{MF16} {R(132+4*r)}, v[128:129], {R(16+2*r,2)}, 0")
    for n in range(8): k(f"v_pk_mul_f32 {R(148+2*n,2)}, {R(132+2*n,2)}, {R(40+2*n,2)} op_sel:[0,0] op_sel_hi:[1,0]")
    for n in range(8): k(f"v_pk_fma_f32 {R(148+2*n,2)}, {R(132+2*n,2)}, {R(40+2*n,2)}, {R(148+2*n,2)} op_sel:[1,1,0] op_sel_hi:[0,1,1] neg_lo:[0,1,0]")
    k("s_cmp_lg_u32 s22, 0")
    with k.skippable("s_cbranch_scc1"):
        k(f"""s_lshl_b32 s64, s3, 6
        v_lshl_add_u32 v174, v9, 9, v8
        v_add_u32 v174, s64, v174
        v_lshlrev_b32 v175, 3, v174""")
        for n in range(8): k(f"ds_write_b64 v175, {R(132+2*n,2)} offset:{LSP + 8*(16*(n>>1) + 256*(n&1))}")
        for n in range(8): k(f"v_lshlrev_b32 v{40+2*n}, 16, v{192+2*n}\nv_and_b32 v{41+2*n}, 0xffff0000, v{192+2*n}")
        for n in range(8): k(f"v_pk_mul_f32 {R(148+2*n,2)}, {R(132+2*n,2)}, {R(40+2*n,2)} op_sel:[0,0] op_sel_hi:[1,0]")
        for n in range(8): k(f"v_pk_fma_f32 {R(148+2*n,2)}, {R(132+2*n,2)}, {R(40+2*n,2)}, {R(148+2*n,2)} op_sel:[1,1,0] op_sel_hi:[0,1,1] neg_lo:[0,1,0]")
        k.wait_lds(); k("s_barrier")
        for n in range(8):
            k(f"""v_sub_u32 v175, {2048 - (16*(n>>1) + 256*(n&1))}, v174
            v_and_b32 v175, 2047, v175
            v_lshlrev_b32 v175, 3, v175
            ds_read_b64 {R(132+2*n,2)}, v175 offset:{LSP}
            v_lshlrev_b32 v{40+2*n}, 16, v{193+2*n}
            v_and_b32 v{41+2*n}, 0xffff0000, v{193+2*n}""")
        for n in range(8):
            F = R(132+2*n, 2); W = R(40+2*n, 2); T = R(148+2*n, 2)
            k(f"""v_pk_fma_f32 {T}, {F}, {W}, {T} op_sel:[0,0,0] op_sel_hi:[1,0,1] neg_hi:[1,0,0]
            v_pk_fma_f32 {T}, {F}, {W}, {T} op_sel:[1,1,0] op_sel_hi:[0,1,1]""")
    for n in range(8): k(f"v_cvt_pk_bf16_f32 v{16+n}, v{148+2*n}, v{149+2*n}")
    for r in range(4): k(f"{MF16} {R(132+4*r)}, v[130:131], {R(16+2*r,2)}, 0")
    for r in range(4):
        for e in range(2): k(f"v_cvt_pk_bf16_f32 v{24+4*e+r}, v{132+4*r+2*e}, v{133+4*r+2*e}")
    k(f"ds_write_b128 v168, v[24:27] offset:{LE0}\nds_write_b128 v168, v[28:31] offset:{LE0+4096}")
    k.wait_lds(); k("s_barrier")
    k(f"ds_read_b128 v[16:19], v169 offset:{LE0}\nds_read_b128 v[20:23], v169 offset:{LE0+4096}")
    stage(88, True)
    twiddle(+1)
    stage(104, False)
    for e in range(2):
        for r in range(4): k(f"v_cvt_pk_bf16_f32 v{224+4*e+r}, v{132+8*e+r}, v{136+8*e+r}")
        k(f"buffer_store_dwordx4 {R(224+4*e)}, v170, s[28:31], s{60+e} offen sc1")
    stamp()
    k.extend(touch("w2b", 24))
    w1tr(0, 16)
    k(f"""v_mul_u32_u24 v20, {XP}, v10
    v_lshl_add_u32 v20, v9, 7, v20
    v_lshl_add_u32 v20, v11, 2, v20
    s_lshl_b32 s56, s3, 3
    v_add_u32 v20, s56, v20""")
    for t in range(2):
        for r in range(4): k(f"ds_read_b32 v{208+4*t+r}, v20 offset:{512*t+32*r}")
    k.wait_lds(); k("s_barrier")
    with k.capture() as cC:
        k(f"""v_cvt_f32_u32 v248, v8
        v_lshlrev_b32 v249, 2, v9
        v_cvt_f32_u32 v249, v249
        v_mul_f32 v250, {f2h(1/16)}, v248
        v_cmp_lt_u32 vcc, 1, v9
        v_mov_b32 v251, 0x80000000
        v_mul_f32 v240, v249, v250
        v_cndmask_b32 v251, 0, v251, vcc
        v_add_f32 v242, v240, v250
        v_add_f32 v244, v242, v250
        v_add_f32 v246, v244, v250""")
        for r in range(4): k(f"v_sin_f32 v{241+2*r}, v{240+2*r}\nv_cos_f32 v{240+2*r}, v{240+2*r}")
        for r in range(4):
            k(f"""v_cvt_pk_bf16_f32 v{144+r}, v{240+2*r}, -v{241+2*r}
            v_cvt_pk_bf16_f32 v{148+r}, v{241+2*r}, v{240+2*r}
            v_xor_b32 v{144+r}, v251, v{144+r}
            v_xor_b32 v{148+r}, v251, v{148+r}""")
        k(f"""s_lshl_b32 s56, s3, 2
        v_cvt_f32_u32 v250, s56
        v_fmac_f32 v250, {f2h(16.0)}, v248
        v_mul_f32 v250, {f2h(1/512)}, v250
        v_mul_f32 v254, 0.5, v248
        v_mov_b32 v255, {f2h(0.25)}
        v_cmp_eq_u32 vcc, 0, v9
        v_cndmask_b32 v254, v255, v254, vcc""")
        for n in range(4):
            for t in range(2):
                d = 160 + 8*n + 4*t
                k(f"""v_add_f32 v251, {f2h((256*t + n)/512)}, v250
                v_mul_f32 v240, v249, v251
                v_add_f32 v241, v240, v254
                v_add_f32 v242, v240, v251
                v_cos_f32 v240, v240
                v_cos_f32 v241, v241
                v_add_f32 v244, v242, v251
                v_sin_f32 v243, v242
                v_cos_f32 v242, v242
                v_add_f32 v246, v244, v251
                v_sin_f32 v245, v244
                v_cos_f32 v244, v244
                v_cvt_pk_bf16_f32 v{d}, v240, v241
                v_sin_f32 v247, v246
                v_cos_f32 v246, v246
                v_cvt_pk_bf16_f32 v{d+1}, v242, -v243
                v_cvt_pk_bf16_f32 v{d+2}, v244, -v245
                v_cvt_pk_bf16_f32 v{d+3}, v246, -v247""")
        for r in range(128, 144): k(f"v_mov_b32 v{r}, 0")
        for t in range(2):
            for r in range(4):
                k(f"v_lshlrev_b32 v{192+4*t+r}, 16, v{208+4*t+r}\nv_and_b32 v{200+4*t+r}, 0xffff0000, v{208+4*t+r}")
        k(f"""v_lshlrev_b32 v16, 13, v11
        v_lshl_add_u32 v16, v9, 10, v16
        v_lshl_add_u32 v16, v10, 2, v16
        s_lshl_b32 s62, s23, 18
        s_add_u32 s62, s62, {WS_X}
        s_lshl_b32 s56, s3, 14
        s_add_u32 s56, s56, s62
        s_lshl_b32 s57, s24, 5
        s_add_u32 s56, s56, s57
        s_add_u32 s56, s56, 131072
        s_add_u32 s57, s56, 4096
        s_add_u32 s62, s62, {ALT}
        v_lshlrev_b32 v18, 4, v10
        v_lshl_add_u32 v17, v9, 11, v18
        v_lshl_add_u32 v17, v11, 3, v17
        s_lshl_b32 s58, s3, 7
        s_add_u32 s58, s58, {LE1}
        v_add_u32 v17, s58, v17
        v_lshl_add_u32 v19, v9, 8, v18
        v_lshl_add_u32 v19, v11, 11, v19
        v_lshl_add_u32 v18, v9, 7, v18
        s_lshl_b32 s58, s3, 11
        s_add_u32 s58, s58, {LE1}
        v_add_u32 v18, s58, v18
        v_lshlrev_b32 v21, 5, v10
        v_add_u32 v21, {LST}, v21
        v_lshrrev_b32 v20, 5, v0
        v_lshl_add_u32 v20, v20, 4, v21
        s_lshl_b32 s58, s3, 2
        v_add_u32 v20, s58, v20
        s_lshr_b32 s58, s24, 1
        s_lshl_b32 s58, s58, 14
        s_add_u32 s58, s58, s62
        s_lshl_b32 s59, s3, 12
        s_add_u32 s58, s58, s59
        s_and_b32 s59, s24, 1
        s_lshl_b32 s59, s59, 7
        s_add_u32 s58, s58, s59
        v_lshlrev_b32 v22, 2, v10
        v_lshlrev_b32 v23, 3, v0
        v_cmp_gt_u32 vcc, 8, v1
        v_mov_b32 v255, {OOB}
        v_cndmask_b32 v23, v255, v23, vcc
        s_lshl_b32 s59, s24, 6
        s_add_u32 s59, s59, s65
        v_mov_b32 v255, 0x3f803f80""")
    k.extend(interleave(cC, w1dma(1), every=opt.get("x2_every", 9)))
    k("s_cmp_lg_u32 s3, 0")
    with k.skippable("s_cbranch_scc1"):
        k(f"""v_cmp_lt_u32 vcc, 1, v9
        v_mul_f32 v241, {f2h(1/512)}, v248
        v_mul_f32 v240, {f2h(32.0)}, v249
        v_sub_f32 v246, {f2h(496.0)}, v240
        v_mov_b32 v245, {f2h(32.0)}
        v_cndmask_b32 v240, v240, v246, vcc
        v_cndmask_b32 v245, v245, -v245, vcc""")
        for r in range(4):
            k(f"""v_mul_f32 v242, v240, v241
            v_add_f32 v240, v240, v245
            v_sin_f32 v243, v242
            v_cos_f32 v242, v242
            v_cvt_pk_bf16_f32 v244, v242, -v243
            v_cndmask_b32 v{152+r}, v244, 0, vcc
            v_cndmask_b32 v{156+r}, 0, v244, vcc""")
        k(f"""v_and_b32 v242, 1, v8
        v_lshlrev_b32 v242, 31, v242
        v_or_b32 v242, 0x3f003f00, v242
        v_cmp_eq_u32 vcc, 0, v9
        v_cndmask_b32 v152, v152, v242, vcc""")
    idl = "buffer_load_dword v254, v22, s[28:31], s65 offen sc1"
    zl2 = "\n".join(f"buffer_load_dword v{216+4*p+r}, v16, s[28:31], s{56+p} offen offset:{256*r} sc1" for p in range(2) for r in range(4))
    stamp()
    k(idl); k(zl2)
    poll(idl, "v_subrev_u32 v253, s72, v254\nv_cmp_lt_u32 vcc, 15, v253", "pid")
    k("v_cmp_ne_u32 vcc, s71, v254\ns_cmp_eq_u64 vcc, 0\ns_cselect_b32 s70, 1, 0")
    if opt.get("force_slow"): k("s_mov_b32 s70, 0")
    poll(zl2, """v_max3_u32 v240, v216, v217, v218
    v_max3_u32 v241, v219, v220, v221
    v_max3_u32 v240, v240, v222, v223
    v_max_u32 v240, v240, v241
    v_cmp_eq_u32 vcc, -1, v240""", "pz2")
    stamp()
    k(f"{MF} {R(224)}, {R(144)}, {R(216)}, 0\n{MF} {R(228)}, {R(148)}, {R(216)}, 0")
    k(f"{MF} {R(232)}, {R(144)}, {R(220)}, 0\n{MF} {R(236)}, {R(148)}, {R(220)}, 0")
    k("s_cmp_lg_u32 s3, 0")
    with k.skippable("s_cbranch_scc1"):
        k(f"{MF} {R(240)}, {R(152)}, {R(216)}, 0\n{MF} {R(244)}, {R(156)}, {R(216)}, 0")
        for r in range(8): k(f"v_cndmask_b32 v{224+r}, v{224+r}, v{240+r}, s[4:5]")
    for r in range(4):
        for p in range(2): k(f"v_cvt_pk_bf16_f32 v{240+2*r+p}, v{224+8*p+r}, v{228+8*p+r}")
        k(f"ds_write_b64 v17, {R(240+2*r,2)} offset:{512*r}")
    k.wait_lds(); k("s_barrier")
    k(f"""s_mov_b64 exec, s[4:5]
    ds_read_b128 {R(128)}, v18
    ds_read_b128 {R(132)}, v18 offset:512
    s_mov_b64 exec, s[6:7]
    ds_read_b128 {R(136)}, v18 offset:1024
    ds_read_b128 {R(140)}, v18 offset:1536
    s_mov_b64 exec, -1""")
    for hv in range(2):
        for e in range(2):
            for t in range(2):
                n = 2*hv + e
                k(f"{MF} {R(192+8*e+4*t)}, {R(160+8*n+4*t)}, {R(128+4*n)}, {R(192+8*e+4*t)}")
    k("v_mov_b32 v248, 0\nv_mov_b32 v249, 0\nv_mov_b32 v250, 0\nv_mov_b32 v251, 0")
    for t in range(2):
        for r in range(4): k(f"v_cvt_pk_bf16_f32 v{240+4*t+r}, v{192+4*t+r}, v{200+4*t+r}")
    for n in range(4):
        k(f"""v_dot2c_f32_bf16 v248, v{240+n}, v255
        v_dot2c_f32_bf16 v249, v{240+n}, v{240+n}
        v_dot2c_f32_bf16 v250, v{244+n}, v255
        v_dot2c_f32_bf16 v251, v{244+n}, v{244+n}""")
    k("""v_add_f32 v248, v248, v250
    v_add_f32 v249, v249, v251
    v_permlane32_swap_b32 v248, v249
    v_add_f32 v248, v248, v249
    v_mov_b32 v249, v248
    v_permlane16_swap_b32 v248, v249
    v_add_f32 v248, v248, v249
    v_add_f32_dpp v248, v248, v248 row_ror:8 row_mask:0xf bank_mask:0xf
    ds_write_b32 v20, v248""")
    k.wait_lds(); k("s_barrier")
    k(f"""ds_read_b128 {R(224)}, v21
    ds_read_b128 {R(228)}, v21 offset:16
    v_add_f32 v224, v224, v225
    v_add_f32 v226, v226, v227
    v_add_f32 v228, v228, v229
    v_add_f32 v230, v230, v231
    v_add_f32 v224, v224, v226
    v_add_f32 v228, v228, v230
    v_mul_f32 v224, {f2h(1/512)}, v224
    v_mul_f32 v228, {f2h(1/512)}, v228
    v_fma_f32 v228, -v224, v224, v228
    v_max_f32 v228, 0, v228
    v_add_f32 v225, {f2h(1e-5)}, v228
    v_rsq_f32 v228, v225
    v_mul_f32 v229, -v224, v228""")
    for n in range(8): k(f"v_pk_fma_f32 {R(192+2*n,2)}, {R(192+2*n,2)}, v[228:229], v[228:229] op_sel:[0,0,1] op_sel_hi:[1,0,1]")
    for t in range(2):
        for r in range(4): k(f"v_cvt_pk_bf16_f32 v{216+4*t+r}, v{192+4*t+r}, v{200+4*t+r}")
    k("v_mul_f32 v225, v225, v228")
    k.dual("s70", [f"buffer_store_dwordx4 {R(216+4*t)}, v19, s[28:31], s58 offen offset:{1024*t}" for t in range(2)]
           + ["buffer_store_dwordx2 v[224:225], v23, s[28:31], s59 offen offset:768"], "sc1", tag="x3")
    stamp()
    srd(k, 36, 14, 2752)
    srd(k, 40, 18, 1024)
    k(f"""v_cmp_eq_u32 vcc, 0, v0
    v_mov_b32 v3, {OOB}
    v_mov_b32 v4, s72
    v_cndmask_b32 v3, v3, 0, vcc
    s_lshl_b32 s12, s24, 4
    s_lshl_b32 s13, s3, 2
    s_add_u32 s12, s12, s13
    s_add_u32 s12, s12, s65
    v_and_b32 v5, 31, v0
    v_lshlrev_b32 v5, 2, v5""")
    w1tr(1, 24)
    k.wait_tag("x3")
    k.dual("s70", ["buffer_store_dword v4, v3, s[28:31], s12 offen offset:128"], "sc1")
    f3 = "buffer_load_dword v6, v5, s[28:31], s65 offen offset:128 sc1"
    k(f3)
    k(f"""s_lshr_b32 s14, s3, 1
    s_mul_i32 s14, s14, 3
    s_mul_i32 s15, s24, 6
    s_add_u32 s14, s14, s15
    s_and_b32 s15, s3, 1
    s_lshl_b32 s16, s15, 1
    s_add_u32 s16, s16, s14
    s_add_u32 s14, s14, 1
    v_lshlrev_b32 v7, 3, v9
    s_lshl_b32 s17, s16, 6
    s_lshl_b32 s18, s14, 6
    s_lshl_b32 s19, s15, 5
    s_add_u32 s18, s18, s19
    buffer_load_dwordx2 v[80:81], v7, s[36:39], s17 offen
    buffer_load_dwordx2 v[82:83], v7, s[36:39], s17 offen offset:32
    buffer_load_dwordx2 v[84:85], v7, s[36:39], s18 offen
    v_lshlrev_b32 v7, 3, v8
    s_lshl_b32 s17, s24, 7
    buffer_load_dwordx2 v[86:87], v7, s[40:43], s17 offen
    s_add_u32 s19, s62, 65536
    s_lshl_b32 s56, s16, 10
    s_add_u32 s56, s56, s19
    s_cmp_ge_u32 s16, 43
    s_cselect_b32 s56, {OOB}, s56
    s_lshl_b32 s57, s14, 10
    s_add_u32 s57, s57, s19
    s_lshl_b32 s15, s15, 3
    s_add_u32 s57, s57, s15
    s_cmp_ge_u32 s14, 43
    s_cselect_b32 s57, {OOB}, s57
    s_mul_i32 s14, s3, 11
    s_lshl_b32 s15, s14, 10
    s_add_u32 s58, s19, s15
    s_cmp_eq_u32 s3, 3
    s_cselect_b32 s59, {OOB}, s58
    s_lshl_b32 s60, s14, 15
    s_add_u32 s60, s60, s17
    s_lshl_b32 s61, s3, 14
    s_add_u32 s15, s61, {LW2 - 32768}
    s_cmp_ge_u32 s3, 2
    s_cselect_b32 s61, s15, s61
    v_add_u32 v13, 4096, v12
    v_add_u32 v14, 8192, v12""")
    k(f"""s_lshl_b32 s14, s24, 4
    s_sub_u32 s14, s73, s14
    s_and_b32 s15, s3, 1
    s_lshl_b32 s15, s15, 3
    s_add_u32 s14, s14, s15
    s_lshr_b32 s15, s3, 1
    s_lshl_b32 s15, s15, 4
    s_add_u32 s14, s14, s15
    s_lshl_b32 s14, s14, 10
    s_add_u32 s63, s14, s17
    v_lshl_add_u32 v2, v9, 17, v7
    s_lshl_b32 s14, s3, 5
    s_add_u32 s64, s14, s65
    v_lshlrev_b32 v1, 3, v9""")
    k(f"""v_and_b32 v15, 3, v0
    v_lshlrev_b32 v15, 12, v15
    v_bfe_u32 v7, v0, 2, 2
    v_lshl_add_u32 v15, v7, 2, v15
    v_lshl_add_u32 v15, v9, 4, v15
    s_lshr_b32 s14, s24, 2
    s_lshl_b32 s14, s14, 10
    s_and_b32 s15, s24, 3
    s_lshl_b32 s15, s15, 8
    s_add_u32 s14, s14, s15
    s_lshl_b32 s15, s3, 6
    s_add_u32 s14, s14, s15
    s_add_u32 s14, s14, {LG}
    v_add_u32 v15, s14, v15""")
    k(f"""v_mul_u32_u24 v11, 1312, v7
    v_and_b32 v7, 3, v0
    v_mul_u32_u24 v7, 320, v7
    v_add_u32 v11, v11, v7
    v_lshl_add_u32 v11, v9, 4, v11
    s_lshl_b32 s14, s3, 6
    v_add_u32 v11, s14, v11
    v_mul_u32_u24 v10, 320, v9
    v_lshl_add_u32 v10, v8, 4, v10
    s_mul_i32 s14, s3, {RP}
    v_add_u32 v10, s14, v10""")
    k(f"""v_lshrrev_b32 v7, 3, v0
    v_lshrrev_b32 v68, 2, v7
    v_and_b32 v69, 3, v7
    v_lshl_add_u32 v68, v68, 4, v69
    v_lshlrev_b32 v68, 10, v68
    v_bfe_u32 v7, v7, 1, 1
    v_lshlrev_b32 v7, 5, v7
    v_and_b32 v69, 7, v0
    v_lshlrev_b32 v69, 4, v69
    v_xor_b32 v69, v69, v7
    v_add_u32 v68, v68, v69
    v_xor_b32 v69, 64, v68
    v_bfe_u32 v7, v0, 2, 2
    v_lshl_add_u32 v70, v9, 3, v7
    v_lshlrev_b32 v70, 7, v70
    v_lshrrev_b32 v7, 1, v7
    v_lshl_add_u32 v70, v7, 5, v70
    v_and_b32 v7, 1, v9
    v_lshl_add_u32 v70, v7, 6, v70
    v_and_b32 v7, 3, v0
    v_lshl_add_u32 v70, v7, 3, v70
    v_xor_b32 v71, 32, v70
    v_xor_b32 v72, 64, v70
    v_xor_b32 v73, 96, v70
    v_add_u32 v70, s61, v70
    v_add_u32 v71, s61, v71
    v_add_u32 v72, s61, v72
    v_add_u32 v73, s61, v73
    v_add_u32 v7, {LG}, v12
    s_lshl_b32 s13, s3, 12
    s_add_u32 s14, s13, s62
    s_add_u32 s15, s13, {LG}""")
    k.wait_lds(); k("s_barrier")
    poll(f3, "v_cmp_ne_u32 vcc, s72, v6", "pf3")
    stamp()
    for rt in range(4):
        k("s_mov_b32 m0, s15")
        for m in range(4): k(f"buffer_load_dwordx4 v12, s[28:31], s14 offen offset:{1024*m} sc1 lds", tag=f"dma{rt}")
        if rt < 3: k("s_add_u32 s14, s14, 16384\ns_add_u32 s15, s15, 16384")
    for rt in range(4): k(f"buffer_load_dwordx2 {R(136+2*rt,2)}, v1, s[28:31], s64 offen offset:{768+128*rt} sc1")
    for n in range(6): k(f"v_lshlrev_b32 v{16+2*n}, 16, v{80+n}\nv_and_b32 v{17+2*n}, 0xffff0000, v{80+n}")
    for n in range(2): k(f"v_lshlrev_b32 v{132+2*n}, 16, v{86+n}\nv_and_b32 v{133+2*n}, 0xffff0000, v{86+n}")
    def w2reg(s, sg, n=4, o=0): return R(192 + 16*s + 4*sg + o, n, "a") if s < 4 else R(144 + 16*(s-4) + 4*sg + o, n)
    def w2dma(s):
        with k.capture() as L:
            if s >= 4: k.mark("touch", regs=regs_of(w2reg(s-4, 3, 2, 2)))
            for m in range(4):
                k(f"s_add_u32 m0, s61, {(s&3)*4096 + m*1024}"); k.ins[-1].glue = True
                k("s_nop 0"); k.ins[-1].glue = True
                k(f"buffer_load_dwordx4 v{68+(m&1)}, s[48:51], s60 offen lds", tag=f"w2s{s}"); k.ins[-1].glue = True
                k(f"s_add_u32 s60, s60, {4096 if m < 3 else 32768 - 3*4096}")
        return L
    def w2tr(s):
        with k.capture() as L:
            k.wait_tag(f"w2s{s}")
            for sg in range(4):
                k(f"ds_read_b64_tr_b16 {w2reg(s,sg,2)}, v{70+sg} offset:{(s&3)*4096}\nds_read_b64_tr_b16 {w2reg(s,sg,2,2)}, v{70+sg} offset:{(s&3)*4096+512}")
        return L
    def hreg(rt, s): return R(88 + 4*s) if rt == 0 else R(44*(rt-1) + 4*s, 4, "a")
    def hload(rt, s): return f"buffer_load_dwordx4 {hreg(rt,s)}, v{12+(s>>2)}, s[28:31], s{59 if s == 10 else 58} offen offset:{(s&3)*1024} sc1"
    def hnext(): k(f"s_add_u32 s58, s58, {HT}\ns_add_u32 s59, s59, {HT}")
    def rd(rt, kap): return f"ds_read_b128 {R(28+4*(kap&3))}, v7 offset:{rt*16384+kap*1024}"
    def epi(rt):
        a = 44 + 12*(rt & 1)
        with k.capture() as L:
            for n in range(6):
                k(f"""v_max_f32 v74, 0, v{a+2*n}
                v_max_f32 v75, 0, v{a+2*n+1}
                v_mul_f32 v74, v74, v{a+2*n}
                v_mul_f32 v75, v75, v{a+2*n+1}
                v_cvt_pk_bf16_f32 v{80+n}, v74, v75""")
            k.dual("s70", ["buffer_store_dwordx4 v[80:83], v12, s[28:31], s56 offen", "buffer_store_dwordx2 v[84:85], v12, s[28:31], s57 offen"], "sc1", tag=f"h{rt}")
            if rt < 3: k(f"s_add_u32 s56, s56, {HT}\ns_add_u32 s57, s57, {HT}")
        return L
    def flag4(rt):
        k.wait_tag(f"h{rt}")
        k.dual("s70", [f"buffer_store_dword v4, v3, s[28:31], s12 offen offset:{256+128*rt}"], "sc1")
    def f4(rt): return f"buffer_load_dword v6, v5, s[28:31], s65 offen offset:{256+128*rt} sc1"
    FCHK = "v_cmp_ne_u32 vcc, s72, v6"
    for s_ in range(4): k.extend(w2dma(s_))
    k.wait_tag("dma0"); k("s_barrier")
    for kap in range(3): k(rd(0, kap))
    stamp()
    G1F, G1P = opt.get("g1_f", 7), opt.get("g1_p", 11)
    w2plan = {0: [0, 1, 2, 3], 1: [4, 5, 6], 2: [7, 8], 3: [9, 10]}
    for rt in range(4):
        a = 44 + 12*(rt & 1)
        with k.capture() as main:
            for kap in range(16):
                if kap == 12 and rt < 3: k.wait_tag(f"dma{rt+1}"); k("s_barrier")
                if rt >= 2 and kap == G1F: k(f4(rt-2))
                if rt >= 2 and kap == G1P:
                    poll(f4(rt-2), FCHK, f"pf4{rt-2}")
                    if rt == 3: hnext()
                for tau in range(3):
                    c_ = R(16+4*tau) if kap == 0 else R(a+4*tau)
                    k(f"{MF} {R(a+4*tau)}, {R((tau*16+kap)*4, f='a')}, {R(28+4*(kap&3))}, {c_}")
                if rt >= 2 and kap >= G1P:
                    for s in range(3*(kap-G1P), min(11, 3*(kap-G1P)+3)): k(hload(rt-2, s))
                if kap + 3 < 16: k(rd(rt, kap+3))
                elif rt < 3: k(rd(rt+1, kap+3-16))
        fill = epi(rt-1) if rt else []
        for s in w2plan[rt]:
            fill = fill + w2tr(s) + (w2dma(s+3) if 4 <= s + 3 <= 10 else [])
        k.extend(interleave(main, fill, every=1, per=2, start=2, only="mfma"))
        if rt: flag4(rt-1)
    stamp()
    def red_a(rt):
        a = 16 + 16*(rt & 1)
        for sg in range(4): k(f"ds_write_b128 v10, {R(a+4*sg)} offset:{LRD[rt&1] % 65536 + 1312*sg}" if LRD[rt&1] < 65536 else f"ds_write_b128 v76, {R(a+4*sg)} offset:{1312*sg}")
    def red_b(rt):
        k.wait_lds(); k("s_barrier")
        for src in range(4): k(f"ds_read_b128 {R(48+4*src)}, {'v11' if rt % 2 == 0 else 'v77'} offset:{RP*src}")
        r15 = "v15" if rt < 2 else "v78"
        k(f"ds_read_b32 v66, {r15} offset:{(rt&1)*16384}\nds_read_b32 v67, {r15} offset:{(rt&1)*16384+2048}")
        k(f"""v_add_f32 v48, v48, v52
        v_add_f32 v49, v49, v53
        v_add_f32 v50, v50, v54
        v_add_f32 v51, v51, v55
        v_add_f32 v56, v56, v60
        v_add_f32 v57, v57, v61
        v_add_f32 v58, v58, v62
        v_add_f32 v59, v59, v63
        v_lshlrev_b32 v52, 16, v66
        v_and_b32 v53, 0xffff0000, v66
        v_lshlrev_b32 v54, 16, v67
        v_and_b32 v55, 0xffff0000, v67""")
        for r in range(4): k(f"v_fma_f32 v{52+r}, v{52+r}, v{137+2*rt}, v{136+2*rt}")
        for r in range(4): k(f"v_add_f32 v{48+r}, v{48+r}, v{132+r}")
        for r in range(4): k(f"v_add_f32 v{52+r}, v{52+r}, v{56+r}")
        for r in range(4): k(f"v_add_f32 v{48+r}, v{48+r}, v{52+r}")
        k("v_cvt_pk_bf16_f32 v64, v48, v49\nv_cvt_pk_bf16_f32 v65, v50, v51")
        k(f"buffer_store_dwordx2 v[64:65], v2, s[52:55], s63 offen{' sc1' if opt.get('out_sc1', 1) else ''}")
        if rt < 3: k("s_add_u32 s63, s63, 32768")
    k(f"v_add_u32 v76, {LRD[1]}, v10\nv_add_u32 v77, {LRD[1]}, v11\nv_add_u32 v78, 32768, v15")
    for rt in range(4):
        a = 16 + 16*(rt & 1)
        with k.capture() as main:
            for s in range(11):
                if rt < 2 and s == opt.get("g2_f", 4): k(f4(rt+2))
                if rt < 2 and s == opt.get("g2_p", 7): poll(f4(rt+2), FCHK, f"pf4{rt+2}"); hnext()
                for sg in range(4):
                    k(f"{MF} {R(a+4*sg)}, {w2reg(s, sg)}, {hreg(rt, s)}, {'0' if s == 0 else R(a+4*sg)}")
                if rt < 2 and s >= opt.get("g2_p", 7):
                    n0 = (s - opt.get("g2_p", 7))*3
                    for s2 in range(n0, min(11, n0+3)): k(hload(rt+2, s2))
        with k.capture() as fill:
            if rt == 0: k.extend(epi(3))
            else: red_a(rt-1); red_b(rt-1)
        k.extend(interleave(main, fill, every=1, per=2, start=2, only="mfma"))
        if rt == 0: flag4(3)
    red_a(3); red_b(3)
    k(f"s_or_b32 s12, s22, s3\ns_cmp_eq_u32 s12, 0\ns_cselect_b32 s12, {WS_EP}, {OOB}")
    k("buffer_store_dword v4, v3, s[28:31], s12 offen")
    if diag:
        k.wait_vm_all(); stamp()
        k(f"""s_memrealtime s[14:15]
        s_waitcnt lgkmcnt(0)
        s_lshl_b32 s12, s2, 9
        s_lshl_b32 s13, s3, 7
        s_add_u32 s12, s12, s13
        s_add_u32 s12, s12, {WS_DBG}""")
        for n in range(nst[0]): k(f"v_mov_b32 v4, s{74+2*n}\nbuffer_store_dword v4, v3, s[28:31], s12 offen offset:{4*n}")
        k("v_mov_b32 v4, s100\nbuffer_store_dword v4, v3, s[28:31], s12 offen offset:120")
        k("v_mov_b32 v4, s14\nbuffer_store_dword v4, v3, s[28:31], s12 offen offset:124")
        k(f"""s_load_dwordx2 s[16:17], s[0:1], 72
        s_waitcnt lgkmcnt(0)
        s_mov_b32 s18, 64
        s_mov_b32 s19, 0x20000
        s_lshl_b32 s12, s2, 2
        s_add_u32 s12, s12, s3
        s_cmp_eq_u32 s12, {37*4}
        s_cselect_b32 s12, 0, {OOB}""")
        for n in range(1, nst[0]): k(f"s_sub_u32 s13, s{74+2*n}, s74\nv_mov_b32 v4, s13\nbuffer_store_dword v4, v3, s[16:19], s12 offen offset:{4*(n-1)}")
        k("s_sub_u32 s13, s14, s100\nv_mov_b32 v4, s13\nbuffer_store_dword v4, v3, s[16:19], s12 offen offset:60")
    if opt.get("probe") is not None:
        k.wait_vm_all(); stamp()
        if opt.get("tiny"):
            k(f"s_load_dwordx2 s[96:97], s[0:1], 80\ns_waitcnt lgkmcnt(0)\ns_load_dword s100, s[96:97], 256\ns_waitcnt lgkmcnt(0)\ns_mov_b32 s98, s100")
        k(f"s_waitcnt lgkmcnt(0)\ns_sub_u32 s98, s98, s100\ns_add_u32 s98, s98, {opt['pad']}")
        k.label("L_pad")
        k("s_memrealtime s[96:97]\ns_waitcnt lgkmcnt(0)\ns_sub_u32 s96, s96, s100\ns_cmp_lt_u32 s96, s98\ns_cbranch_scc1 L_pad")
    k.label("L_end")
    k("s_endpgm")
    for name, loads, check, br in slow:
        k.mark("reset")
        k.label(f"{name}_retry")
        k("s_mov_b32 s69, 0")
        k.label(f"{name}_loop")
        k(f"s_add_u32 s69, s69, 1\ns_cmp_gt_u32 s69, 4000\ns_cbranch_scc1 {name}_out")
        k(loads); k("s_waitcnt vmcnt(0)"); k(check)
        k(f"{br} {name}_loop")
        k.label(f"{name}_out")
        k(f"s_waitcnt vmcnt(0)\ns_nop 7\ns_branch {name}_ok")
    return k

HEADER = """; Fused kernel: preLN -> 2-D spectral filter (MFMA FFTs) -> residual -> preLN -> squared-ReLU MLP -> residual.
"""
def build_all(diag=False, opt=None):
    k = gen(diag, opt); t = k.text()
    nbytes = (sum(0 if i.raw else 8 for i in k.ins) + 127) & ~127
    k = gen(diag, opt, nbytes); t = k.text()
    lst = (opt or {}).get("aslist")
    launch = f"; @launch kernel={NAME} grid=(256,1,1) block=(256,1,1) lds={LDS_BYTES}" if lst else f"; @launch grid=(256,1,1) block=(256,1,1) lds={LDS_BYTES}"
    if (opt or {}).get("tiny"):
        g, b, l, v = opt["tiny"]
        launch = f"; @launch kernel=tiny_kernel grid=({g},1,1) block=({b},1,1) lds={l}\n" + launch
        t += """
.p2align 8
.globl tiny_kernel
.type tiny_kernel,@function
tiny_kernel:
  s_memrealtime s[4:5]
  s_cmp_lg_u32 s2, 0
  s_cbranch_scc1 tiny_end
  s_load_dwordx2 s[8:9], s[0:1], 80
  s_waitcnt lgkmcnt(0)
  s_mov_b32 s10, 4096
  s_mov_b32 s11, 0x20000
  v_mov_b32 v1, s4
  v_mov_b32 v2, 256
  buffer_store_dword v1, v2, s[8:11], 0 offen
tiny_end:
  s_endpgm"""
        return "\n".join([HEADER + launch, '.amdgcn_target "amdgcn-amd-amdhsa--gfx950"', t, ".fill 4096, 4, 0xbf800000",
                      '.section .rodata,"a"', kd(NAME, 512, 256, 102), kd("tiny_kernel", v, min(v, 256), 32)]) + "\n"
    return "\n".join([HEADER + launch, '.amdgcn_target "amdgcn-amd-amdhsa--gfx950"', t, ".fill 4096, 4, 0xbf800000",
                      '.section .rodata,"a"', kd(NAME, 512, 256, 102)]) + "\n"

if __name__ == "__main__":
    diag = "diag" in sys.argv
    opt = json.loads(sys.argv[-1]) if sys.argv[-1].startswith("{") else {}
    sys.stdout.write(build_all(diag, opt))
```
